```python
import torch

def _softmax(x, axis=-1):
    return torch.softmax(x, dim=axis)
def _gelu(x):
    return torch.nn.functional.gelu(x, approximate="tanh")
def _silu(x):
    return torch.nn.functional.silu(x)
def _sigmoid(x):
    return torch.sigmoid(x)
def _layernorm(x, axis=-1, eps=1e-5):
    m = x.mean(dim=axis, keepdim=True)
    v = x.var(dim=axis, keepdim=True, unbiased=False)
    return (x - m) / torch.sqrt(v + eps)
def _scatter_add(tgt, idx, src, axis=0):
    return tgt.clone().index_add_(axis, idx, src)
def _segment_sum(src, seg, n):
    out = torch.zeros((n,) + src.shape[1:], dtype=src.dtype)
    return out.index_add_(0, seg, src)
def _pad(x, pw):
    flat = tuple(v for pair in reversed(pw) for v in pair)
    return torch.nn.functional.pad(x, flat)

kernel_name = 'concat_heads__mha_block_cached__mha_block_cached__near_ridge'

def setup_inputs():

    _w = (lambda a: (lambda t: t.to(torch.bfloat16) if t.is_floating_point() else t)(torch.as_tensor(a)))
    def _A_setup():
        B, Sq, D = 16, 128, 512
        H, Sk, Dh = 32, 512, 128
        return {
            "x": _w((lambda *s: torch.randn(*s, dtype=torch.bfloat16) * 0.8)(B, Sq, D)),
            "k_cache": _w((lambda *s: torch.randn(*s, dtype=torch.bfloat16) * 0.8)(B, H, Sk, Dh)),
            "v_cache": _w((lambda *s: torch.randn(*s, dtype=torch.bfloat16) * 0.05)(B, H, Sk, Dh)),
            "wq": _w((lambda *s: torch.randn(*s, dtype=torch.bfloat16) * 0.8)(D, H * Dh) * (D ** -0.5)),
            "wo": _w((lambda *s: torch.randn(*s, dtype=torch.bfloat16) * 0.05)(H * Dh, D) * ((H * Dh) ** -0.5)),
        }
    _A_in = _A_setup()

    def _B_setup():
        B, Sq, D = 16, 128, 512
        H, Sk, Dh = 32, 512, 128
        return {
            "x": _w((lambda *s: torch.randn(*s, dtype=torch.bfloat16) * 0.8)(B, Sq, D)),
            "k_cache": _w((lambda *s: torch.randn(*s, dtype=torch.bfloat16) * 0.8)(B, H, Sk, Dh)),
            "v_cache": _w((lambda *s: torch.randn(*s, dtype=torch.bfloat16) * 0.05)(B, H, Sk, Dh)),
            "wq": _w((lambda *s: torch.randn(*s, dtype=torch.bfloat16) * 0.8)(D, H * Dh) * (D ** -0.5)),
            "wo": _w((lambda *s: torch.randn(*s, dtype=torch.bfloat16) * 0.05)(H * Dh, D) * ((H * Dh) ** -0.5)),
        }
    _B_in = _B_setup()

    return {
        "A_x": _A_in["x"],
        "A_k_cache": _A_in["k_cache"],
        "A_v_cache": _A_in["v_cache"],
        "A_wq": _A_in["wq"],
        "A_wo": _A_in["wo"],
        "B_x": _B_in["x"],
        "B_k_cache": _B_in["k_cache"],
        "B_v_cache": _B_in["v_cache"],
        "B_wq": _B_in["wq"],
        "B_wo": _B_in["wo"],
    }

def reference(A_x, A_k_cache, A_v_cache, A_wq, A_wo, B_x, B_k_cache, B_v_cache, B_wq, B_wo):
    def _A_ref(x, k_cache, v_cache, wq, wo):
        B, Sq, D = x.shape
        H, Dh = 32, 128
        q = (lambda x, *d: x.permute(*d))((x @ wq).reshape(B, Sq, H, Dh), 0, 2, 1, 3)
        scores = torch.einsum("bhqd,bhkd->bhqk", q, k_cache) * (Dh ** -0.5)
        p = _softmax(scores, axis=-1)
        o = torch.einsum("bhqk,bhkd->bhqd", p, v_cache)
        return (lambda x, *d: x.permute(*d))(o, 0, 2, 1, 3).reshape(B, Sq, H * Dh) @ wo

    def _B_ref(x, k_cache, v_cache, wq, wo):
        B, Sq, D = x.shape
        H, Dh = 32, 128
        q = (lambda x, *d: x.permute(*d))((x @ wq).reshape(B, Sq, H, Dh), 0, 2, 1, 3)
        scores = torch.einsum("bhqd,bhkd->bhqk", q, k_cache) * (Dh ** -0.5)
        p = _softmax(scores, axis=-1)
        o = torch.einsum("bhqk,bhkd->bhqd", p, v_cache)
        return (lambda x, *d: x.permute(*d))(o, 0, 2, 1, 3).reshape(B, Sq, H * Dh) @ wo

    a = _A_ref(A_x, A_k_cache, A_v_cache, A_wq, A_wo)
    b = _B_ref(B_x, B_k_cache, B_v_cache, B_wq, B_wo)
    return torch.concatenate([a, b], axis=-1)
```

```python
class I:
    __slots__ = ("t", "k", "r", "w", "c", "tag", "srcc")
    def __init__(self, t, k, r=(), w=(), c=1, tag=None, srcc=()):
        self.t = t; self.k = k; self.r = frozenset(r); self.w = frozenset(w); self.c = c; self.tag = tag
        self.srcc = frozenset(srcc)
def V(a, n=1): return [("v", a + i) for i in range(n)]
def A(a, n=1): return [("a", a + i) for i in range(n)]
def S(a, n=1): return [("s", a + i) for i in range(n)]
def vr(a, n): return f"v[{a}:{a+n-1}]" if n > 1 else f"v{a}"
def ar(a, n): return f"a[{a}:{a+n-1}]" if n > 1 else f"a{a}"
def sr(a, n): return f"s[{a}:{a+n-1}]" if n > 1 else f"s{a}"

VALU_K = ("valu", "trans", "perm")
def states(ins):
    if ins.k == "nop": return ins.tag + 1
    if ins.k in ("label", "comment"): return 0
    return 1

def need_states(p, c):
    n = 0
    pv = p.k in VALU_K
    cv = c.k in VALU_K
    if pv and c.k == "mfma" and (p.w & c.r): n = max(n, 2)
    if p.k == "mfma":
        if cv and (p.w & (c.r | c.w)): n = max(n, 12)
        if c.k in ("ds", "vmem", "dma") and (p.w & (c.r | c.w)): n = max(n, 12)
        if c.k == "mfma":
            ab = c.r - c.srcc
            if p.w & ab: n = max(n, 12)
            if (p.w & c.srcc) and p.w != c.srcc: n = max(n, 10)
        if cv and (p.srcc & c.w): n = max(n, 7)
    if p.k == "trans" and c.k in ("valu", "perm") and (p.w & c.r): n = max(n, 1)
    if pv and c.k == "perm" and (p.w & c.r): n = max(n, 2)
    if pv:
        sw = {x for x in p.w if x == "vcc" or (isinstance(x, tuple) and x[0] == "s")}
        if sw:
            if cv and (sw & c.r): n = max(n, 2)
            if c.k in ("vmem", "dma") and (sw & c.r): n = max(n, 5)
            if c.k in ("salu", "branch") and (sw & c.r): n = max(n, 1)
        if c.k == "valu" and c.tag == "rfl" and (p.w & c.r): n = max(n, 1)
    if p.k == "salu" and "m0" in p.w and c.k == "dma": n = max(n, 1)
    if p.k == "vmem" and p.tag == "store" and (p.srcc & c.w): n = max(n, 2)
    return n

def pad_hazards(seq, window=24):
    out = []
    npad = 0
    for c in seq:
        if c.k in ("label", "comment"):
            out.append(c); continue
        dist = 0; need = 0
        for p in reversed(out):
            if dist >= 12: break
            ns = need_states(p, c)
            if ns > dist: need = max(need, ns - dist)
            dist += states(p)
        if need > 0:
            out.append(I(f"s_nop {need-1}", "nop", tag=need - 1)); npad += need
        out.append(c)
    return out, npad

def text(seq):
    o = []
    for i in seq:
        if i.k == "label": o.append(i.t)
        elif i.k == "comment": o.append("; " + i.t)
        else: o.append("  " + i.t)
    return "\n".join(o)
```

```python
import sys, struct, math
from asmlib import *
NAME = "concat_heads__mha_block_cached__mha_block_cached__near_ridge"
WS = 289406976
NSLOT = 10
Q, O, SA, SB, P, NEGM, FR, XF = 0, 32, 96, 128, 160, 176, 192, 216
NB = 6
NXF = 2
vDK, vDV, vDX, vDWQ, vDWO = 224, 225, 226, 227, 228
vLK, vLV, vLX, vLWQ, vLWO = 229, 230, 231, 232, 233
vKb, vKa, vTa, vXb, vXa = 234, 235, 236, 237, 238
vL0, vL1, vMX, vT0, vT1, vST = 239, 240, 241, 242, 243, 244
vID = 250
sK, sV, sX, sWQ, sWO, sWS = 8, 12, 16, 32, 48, 64
sWL = 68
sTMP = 69
sC = 70
sTH = 71
sT = 72
sT2 = 80
sT3 = 88
sRET = 96
sSTAMP = 98

def f32(x): return "0x%08x" % struct.unpack("<I", struct.pack("<f", x))[0]

class Gen:
    def __init__(self, LA=4, budget=6, dma_cost=3, kvflag=" nt", wflag="", stflag="", stamps=False, thr=10.0, pairwait=True,
                 sync_att=1, sync_wo=1):
        self.LA = LA; self.budget = budget; self.dma_cost = dma_cost
        self.kvflag = kvflag; self.wflag = wflag; self.stflag = stflag; self.stamps = stamps; self.thr = thr
        self.pairwait = pairwait; self.sync_att = sync_att; self.sync_wo = sync_wo
        self.units = []; self.tiles = []

    def tile(self, kind, head, idx):
        self.tiles.append(dict(kind=kind, head=head, idx=idx, n=len(self.tiles)))
        return len(self.tiles) - 1

    def build_units(self):
        U = self.units
        def QK(h, j):
            t = self.tile("K", h, j); Sx = SA if j % 2 == 0 else SB; mf = []
            for s in range(8):
                for kb in range(2):
                    c = None if s else ("0" if j == 0 else "negm")
                    mf.append(dict(D=("v", Sx + 16 * kb), B=Q + 4 * s, C=c, rd=("K", t, s, kb)))
            U.append(dict(kind="QK", h=h, j=j, tiles=[t], mf=mf))
        def PV(h, j):
            t = self.tile("V", h, j); mf = []
            for ks in range(4):
                for db in range(4):
                    c = "0" if (j == 0 and ks == 0) else None
                    mf.append(dict(D=("v", O + 16 * db), B=P + 4 * ks, C=c, rd=("T", t, [(ks + 8 * z) * 1024 + db * 256 for z in range(2)])))
            U.append(dict(kind="PV", h=h, j=j, tiles=[t], mf=mf))
        def QP(h, i):
            tx = self.tile("X", h, i); tw = self.tile("WQ", h, i); mf = []
            for s in range(4):
                for db in range(4):
                    c = "0" if (i == 0 and s == 0) else None
                    d = (Q + 16 * db) if db < 2 else (SA + 16 * (db - 2))
                    m = dict(D=("v", d), B=XF + 4 * (s % NXF), C=c, rd=("T", tw, [(4 * s + z) * 1024 + db * 256 for z in range(2)]))
                    if db == 0: m["xr"] = (tx, s)
                    mf.append(m)
            U.append(dict(kind="QP", h=h, j=i, tiles=[tx, tw], mf=mf))
        def WOu(h, u):
            t = self.tile("WO", h, u); mf = []
            for s in range(8):
                for nb in range(2):
                    c = "0" if (h == 0 and s == 0) else None
                    mf.append(dict(D=("a", 16 * (2 * u + nb)), B=O + 4 * s, C=c, rd=("T", t, [(4 * s + 2 * z) * 512 + nb * 256 for z in range(2)])))
            U.append(dict(kind="WO", h=h, j=u, tiles=[t], mf=mf))
        for i in range(8): QP(0, i)
        QK(0, 0)
        for h in range(4):
            for j in range(1, 8):
                QK(h, j); PV(h, j - 1)
            if h < 3:
                QP(h + 1, 0); PV(h, 7)
                for i in range(1, 8): QP(h + 1, i)
                for u in range(7): WOu(h, u)
                QK(h + 1, 0); WOu(h, 7)
            else:
                PV(h, 7)
                for u in range(8): WOu(h, u)
        g = 0
        for u in U:
            u["start"] = g; g += 16
        self.NM = g
        self.find = {(u["kind"], u["h"], u["j"]): u for u in U}

    def mfma(self, m, g):
        fb = FR + 4 * (g % NB)
        k, d = m["D"]
        dt = vr(d, 16) if k == "v" else ar(d, 16)
        dw = V(d, 16) if k == "v" else A(d, 16)
        if m["C"] == "0": ct, cr = "0", []
        elif m["C"] == "negm": ct, cr = vr(NEGM, 16), V(NEGM, 16)
        else: ct, cr = dt, dw
        return I(f"v_mfma_f32_32x32x16_bf16 {dt}, {vr(fb,4)}, {vr(m['B'],4)}, {ct}", "mfma",
                 r=V(fb, 4) + V(m["B"], 4) + cr, w=dw, srcc=cr)

    def reads(self, m, g, first):
        fb = FR + 4 * (g % NB); o = []
        if "xr" in m:
            tx, s = m["xr"]; base = (tx % NSLOT) * 16384
            if s == 0:
                o.append(I(f"v_add_u32 v{vXb}, {base}, v{vLX}", "valu", r=V(vLX), w=V(vXb))); ax = vXb
            else:
                o.append(I(f"v_xor_b32 v{vXa}, {s << 5}, v{vXb}", "valu", r=V(vXb), w=V(vXa))); ax = vXa
            o.append(I(f"ds_read_b128 {vr(m['B'],4)}, v{ax}", "ds", r=V(ax), w=V(m["B"], 4), tag=tx))
        rd = m["rd"]
        if rd[0] == "K":
            _, t, s, kb = rd; base = (t % NSLOT) * 16384
            if s == 0 and kb == 0: o.append(I(f"v_add_u32 v{vKb}, {base}, v{vLK}", "valu", r=V(vLK), w=V(vKb)))
            if s > 0 and kb == 0: o.append(I(f"v_xor_b32 v{vKa}, {s << 5}, v{vKb}", "valu", r=V(vKb), w=V(vKa)))
            a = vKb if s == 0 else vKa
            o.append(I(f"ds_read_b128 {vr(fb,4)}, v{a} offset:{kb * 2048}", "ds", r=V(a), w=V(fb, 4), tag=t))
        else:
            _, t, offs = rd; base = (t % NSLOT) * 16384
            if first:
                lb = {"V": vLV, "WQ": vLWQ, "WO": vLWO}[self.tiles[t]["kind"]]
                o.append(I(f"v_add_u32 v{vTa}, {base}, v{lb}", "valu", r=V(lb), w=V(vTa)))
            for z in range(2):
                o.append(I(f"ds_read_b64_tr_b16 {vr(fb + 2 * z, 2)}, v{vTa} offset:{offs[z]}", "ds", r=V(vTa), w=V(fb + 2 * z, 2), tag=t))
        return o

    def dma_ops(self, n):
        t = self.tiles[n]; k = t["kind"]; o = []
        vd = {"K": vDK, "V": vDV, "X": vDX, "WQ": vDWQ, "WO": vDWO}[k]
        if t["idx"] == 0 and t["head"] > 0 and k != "X":
            step = {"K": 4 * 131072, "V": 4 * 131072, "WQ": 4 * 256, "WO": 4 * 131072}[k]
            o.append(I(f"v_add_u32 v{vd}, {step}, v{vd}", "valu", r=V(vd), w=V(vd)))
        o.append(I(f"s_add_u32 m0, s{sWL}, {(n % NSLOT) * 16384}", "salu", r=S(sWL), w=["m0", "scc"]))
        so = {"K": sT3, "V": sT3, "X": sT, "WQ": sT2, "WO": sT}[k] + t["idx"]
        for q in range(4):
            srd = {"K": sK, "V": sV, "X": sX + 4 * q, "WQ": sWQ + 4 * q, "WO": sWO + 4 * q}[k]
            fl = self.kvflag if k in "KV" else self.wflag
            off = f" offset:{1024 * q}" if q else ""
            o.append(I(f"buffer_load_dwordx4 v{vd}, {sr(srd,4)}, s{so} offen{off}{fl} lds", "dma",
                       r=V(vd) + S(srd, 4) + S(so) + ["m0"], c=self.dma_cost, tag=n))
        return o

    def valu_tasks(self):
        T = []
        F = self.find
        self.branches = {}
        self.tramps = []
        def vop(t, r, w, k="valu", c=1): return I(t, k, r=r, w=w, c=c)
        def maxops(Sx):
            o = [vop(f"v_max3_f32 v{vMX}, v{Sx}, v{Sx+1}, v{Sx+2}", V(Sx, 3), V(vMX))]
            for i in range(3, 31, 2):
                o.append(vop(f"v_max3_f32 v{vMX}, v{vMX}, v{Sx+i}, v{Sx+i+1}", V(vMX) + V(Sx + i, 2), V(vMX)))
            o.append(vop(f"v_max_f32 v{vMX}, v{vMX}, v{Sx+31}", V(vMX) + V(Sx + 31), V(vMX)))
            return o
        for h in range(4):
            lo = F[("QP", h, 7)]["start"] + 15 + 3; hi = F[("QK", h, 0)]["start"] - 2
            if hi < lo: lo = hi = F[("QK", h, 0)]["start"] - 1
            t = []
            for i in range(32):
                s0 = (Q + 2 * i) if i < 16 else (SA + 2 * (i - 16))
                t.append([lo, hi, vop(f"v_mul_f32 v{s0}, s{sC}, v{s0}", V(s0) + S(sC), V(s0))])
                t.append([lo, hi, vop(f"v_mul_f32 v{s0+1}, s{sC}, v{s0+1}", V(s0 + 1) + S(sC), V(s0 + 1))])
                t.append([lo, hi, vop(f"v_cvt_pk_bf16_f32 v{Q+i}, v{s0}, v{s0+1}", V(s0, 2), V(Q + i))])
            T.append(t)
            for j in range(8):
                Sx = SA if j % 2 == 0 else SB
                qk = F[("QK", h, j)]; pv = F[("PV", h, j)]
                t = []
                if j == 0:
                    lo = qk["start"] + 15 + 3; hi = F[("QK", h, 1)]["start"] - 2
                    if hi < lo: lo = hi = F[("QK", h, 1)]["start"] - 1
                    for o in maxops(Sx): t.append([lo, hi, o])
                    t.append([lo, hi, vop(f"v_mov_b32 v{vT0}, v{vMX}", V(vMX), V(vT0))])
                    t.append([lo, hi, vop(f"v_permlane32_swap_b32 v{vT0}, v{vMX}", V(vT0) + V(vMX), V(vT0) + V(vMX), k="perm")])
                    t.append([lo, hi, vop(f"v_max_f32 v{vMX}, v{vMX}, v{vT0}", V(vMX) + V(vT0), V(vMX))])
                    for i in range(16):
                        t.append([lo, hi, vop(f"v_sub_f32 v{NEGM+i}, 0, v{vMX}", V(vMX), V(NEGM + i))])
                    elo = lo
                else:
                    ppv = F[("PV", h, j - 1)]
                    lo = qk["start"] + 15 + 3; bg = ppv["start"] + 15
                    tc = [[lo, bg - 1, o] for o in maxops(Sx)]
                    tc.append([lo, bg - 1, vop(f"v_cmp_gt_f32 vcc, v{vMX}, v{vT1}", V(vMX) + V(vT1), ["vcc"])])
                    T.append(tc)
                    lab = f"L_r{h}_{j}"
                    self.branches[bg] = [I(f"s_cbranch_vccnz {lab}t", "branch", r=["vcc"]), I(f"{lab}:", "label")]
                    self.tramps.append((lab, "A" if j % 2 == 0 else "B"))
                    elo = bg + 0.5
                for p in range(16):
                    a = Sx + 2 * p
                    hi = max(pv["start"] + 4 * (p // 4) - 2, int(elo))
                    if hi >= pv["start"] + 4 * (p // 4): raise Exception("deadline")
                    if j == 0:
                        t.append([elo, hi, vop(f"v_add_f32 v{a}, v{a}, v{NEGM}", V(a) + V(NEGM), V(a))])
                        t.append([elo, hi, vop(f"v_add_f32 v{a+1}, v{a+1}, v{NEGM}", V(a + 1) + V(NEGM), V(a + 1))])
                    t.append([elo, hi, vop(f"v_exp_f32 v{a}, v{a}", V(a), V(a), k="trans", c=2)])
                    t.append([elo, hi, vop(f"v_exp_f32 v{a+1}, v{a+1}", V(a + 1), V(a + 1), k="trans", c=2)])
                    if j == 0 and p == 0:
                        t.append([elo, hi, vop(f"v_mov_b32 v{vL0}, v{a}", V(a), V(vL0))])
                        t.append([elo, hi, vop(f"v_mov_b32 v{vL1}, v{a+1}", V(a + 1), V(vL1))])
                    else:
                        t.append([elo, hi, vop(f"v_add_f32 v{vL0}, v{vL0}, v{a}", V(a) + V(vL0), V(vL0))])
                        t.append([elo, hi, vop(f"v_add_f32 v{vL1}, v{vL1}, v{a+1}", V(a + 1) + V(vL1), V(vL1))])
                    t.append([elo, hi, vop(f"v_cvt_pk_bf16_f32 v{P+p}, v{a}, v{a+1}", V(a, 2), V(P + p))])
                T.append(t)
            lo = F[("PV", h, 7)]["start"] + 15 + 3; hi = F[("WO", h, 0)]["start"] - 2
            if hi < lo: lo = hi = F[("WO", h, 0)]["start"] - 1
            l2 = F[("PV", h, 7)]["start"] + 12
            t = [[l2, hi, vop(f"v_add_f32 v{vL0}, v{vL0}, v{vL1}", V(vL0) + V(vL1), V(vL0))],
                 [l2, hi, vop(f"v_mov_b32 v{vL1}, v{vL0}", V(vL0), V(vL1))],
                 [l2 + 1, hi, vop(f"v_permlane32_swap_b32 v{vL1}, v{vL0}", V(vL0) + V(vL1), V(vL0) + V(vL1), k="perm")],
                 [l2 + 1, hi, vop(f"v_add_f32 v{vL0}, v{vL0}, v{vL1}", V(vL0) + V(vL1), V(vL0))],
                 [l2 + 1, hi, vop(f"v_rcp_f32 v{vL0}, v{vL0}", V(vL0), V(vL0), k="trans", c=2)]]
            for i in range(32):
                s0 = O + 2 * i
                t.append([lo, hi, vop(f"v_mul_f32 v{s0}, v{vL0}, v{s0}", V(s0) + V(vL0), V(s0))])
                t.append([lo, hi, vop(f"v_mul_f32 v{s0+1}, v{vL0}, v{s0+1}", V(s0 + 1) + V(vL0), V(s0 + 1))])
                t.append([lo, hi, vop(f"v_cvt_pk_bf16_f32 v{O+i}, v{s0}, v{s0+1}", V(s0, 2), V(O + i))])
            T.append(t)
        t = []
        for u in range(8):
            lo = min(F[("WO", 3, u)]["start"] + 15 + 3, self.NM - 1); hi = self.NM - 1
            t.append([lo, hi, I(f"s_lshl_b32 s{sTMP}, s{sT+u}, 5", "salu", r=S(sT + u), w=S(sTMP) + ["scc"])])
            for nb in range(2):
                ab = 16 * (2 * u + nb); tb = SA + 16 * ((2 * u + nb) % 4); pb = P + 8 * ((2 * u + nb) % 4)
                for uu in range(2):
                    for i in range(8 * uu, 8 * uu + 8):
                        t.append([lo, hi, vop(f"v_accvgpr_read_b32 v{tb+i}, a{ab+i}", A(ab + i), V(tb + i))])
                    for i in range(4 * uu, 4 * uu + 4):
                        t.append([lo, hi, vop(f"v_cvt_pk_bf16_f32 v{pb+i}, v{tb+2*i}, v{tb+2*i+1}", V(tb + 2 * i, 2), V(pb + i))])
                    d = pb + 4 * uu
                    t.append([lo, hi, I(f"buffer_store_dwordx4 {vr(d,4)}, v{vST}, {sr(sWS,4)}, s{sTMP} offen offset:{nb*2048+uu*1024}{self.stflag}",
                                        "vmem", r=V(d, 4) + V(vST) + S(sWS, 4) + S(sTMP), c=self.dma_cost, tag="store", srcc=V(d, 4))])
        T.append(t)
        return T

    def schedule(self):
        LA = self.LA; U = self.units
        M = [(u, i, m) for u in U for i, m in enumerate(u["mf"])]
        last = {}
        for g, (u, i, m) in enumerate(M):
            last[m["rd"][1]] = g
            if "xr" in m: last[m["xr"][0]] = g
        syncs = {}
        k = 0
        while k < len(U):
            u = U[k]; n = 1
            if u["kind"] == "QK" and k + 1 < len(U) and U[k + 1]["kind"] == "PV" and self.sync_att == 2: n = 2
            if u["kind"] == "WO" and k + 1 < len(U) and U[k + 1]["kind"] == "WO" and self.sync_wo == 2: n = 2
            syncs[u["start"]] = [t for x in U[k:k + n] for t in x["tiles"]]
            k += n
        T = self.valu_tasks(); ptr = [0] * len(T)
        out = []
        vm = []
        nxt = 0
        pend = []
        def emit(x):
            out.append(x)
            if x.k in ("dma", "vmem"): vm.append(x.tag)
        while nxt < NSLOT:
            for x in self.dma_ops(nxt): emit(x)
            nxt += 1
        self.after_init_dma = len(out)
        over = 0
        for g in range(-1, self.NM):
            used = 0
            if g >= 0:
                emit(self.mfma(M[g][2], g))
                used += 0.5 if self.pairwait else 1
            tg = [g + LA] if g >= 0 else list(range(0, LA))
            for r in tg:
                if r >= self.NM: continue
                if r in syncs:
                    need = syncs[r]
                    for x in list(pend):
                        if any(y.tag in need for y in pend if y.k == "dma"):
                            emit(pend.pop(0))
                    idx = max(i for i, tg_ in enumerate(vm) if tg_ in need)
                    assert all(vm.count(t_) == 4 for t_ in need), (need, r)
                    n = len(vm) - 1 - idx
                    assert n <= 63
                    emit(I(f"s_waitcnt vmcnt({n})", "wait")); emit(I("s_barrier", "barrier")); used += 2
                    while nxt < len(self.tiles) and last[nxt - NSLOT] <= g:
                        pend += self.dma_ops(nxt); nxt += 1
                for x in self.reads(M[r][2], r, M[r][1] == 0):
                    emit(x); used += x.c
            if pend:
                while pend:
                    x = pend.pop(0); emit(x); used += x.c
                    if x.k == "dma": break
                if pend and pend[0].k != "dma":
                    pass
            for gg in (g, g + 0.5):
                while True:
                    best = None
                    for ti, t in enumerate(T):
                        if ptr[ti] < len(t) and t[ptr[ti]][0] <= gg:
                            if best is None or t[ptr[ti]][1] < T[best][ptr[best]][1]: best = ti
                    if best is None: break
                    lo, hi, x = T[best][ptr[best]]
                    if used + x.c > self.budget and hi > g: break
                    emit(x); used += x.c; ptr[best] += 1
                if gg == g and g in self.branches:
                    for x in self.branches[g]: emit(x)
                    used += 1
            over += max(0, used - self.budget)
        assert all(ptr[i] == len(t) for i, t in enumerate(T)), [(ptr[i], len(t)) for i, t in enumerate(T)]
        assert not pend and nxt == len(self.tiles)
        self.over = over
        return out

    def lgkm_pass(self, seq):
        out = []; q = []
        mf_idx = [i for i, x in enumerate(seq) if x.k == "mfma"]
        nextmf = {a: b for a, b in zip(mf_idx, mf_idx[1:])}
        cnt = 0
        for i, x in enumerate(seq):
            touch = set(x.r | x.w)
            if x.k == "mfma":
                if self.pairwait and cnt % 2 == 0 and i in nextmf: touch |= set(seq[nextmf[i]].r)
                cnt += 1
            if x.k not in ("label", "comment"):
                idx = max([j for j, w in enumerate(q) if w & touch], default=-1)
                if idx >= 0:
                    n = len(q) - 1 - idx
                    assert n <= 15
                    out.append(I(f"s_waitcnt lgkmcnt({n})", "wait")); q = q[idx + 1:]
            out.append(x)
            if x.k == "ds": q.append(set(x.w))
            assert len(q) <= 15, len(q)
        return out

    def setup(self):
        o = []
        def s(t): o.append(t)
        s("s_cmp_ge_u32 s2, 256"); s("s_cbranch_scc1 L_end1")
        if self.stamps: s(f"s_memrealtime s[{sSTAMP}:{sSTAMP+1}]")
        s("s_and_b32 s3, s2, 7"); s("s_lshr_b32 s4, s2, 3")
        s("s_lshr_b32 s5, s3, 2")
        s("s_mul_i32 s6, s5, 40"); s("s_add_u32 s6, s0, s6"); s("s_addc_u32 s7, s1, 0")
        s("s_load_dwordx4 s[72:75], s[6:7], 0")
        s("s_load_dwordx4 s[76:79], s[6:7], 16")
        s("s_load_dwordx2 s[80:81], s[6:7], 32")
        s("s_load_dwordx2 s[82:83], s[0:1], 96")
        s(f"v_lshrrev_b32 v245, 6, v0"); s(f"v_and_b32 v246, 63, v0")
        s(f"v_readfirstlane_b32 s{sWL}, v245")
        s("s_and_b32 s84, s3, 1"); s("s_lshl_b32 s84, s84, 3"); s("s_lshr_b32 s85, s4, 2"); s("s_add_u32 s84, s84, s85")
        s("s_bfe_u32 s86, s3, 0x10001"); s("s_and_b32 s87, s4, 3")
        s("s_lshl_b32 s88, s86, 4"); s("s_add_u32 s88, s88, s87")
        s("s_lshl_b32 s89, s86, 2"); s("s_add_u32 s89, s89, s87")
        s("s_lshl_b32 s90, s87, 1"); s("s_add_u32 s90, s90, s85")
        L, W = 246, 245
        t0, t1, t2, t3 = 247, 248, 249, 251
        s("s_lshl_b32 s91, s84, 5"); s("s_add_u32 s91, s91, s88"); s("s_lshl_b32 s91, s91, 17")
        s(f"v_lshrrev_b32 v{t0}, 4, v{L}")
        s(f"v_lshl_add_u32 v{t1}, v{W}, 2, v{t0}")
        s(f"v_and_b32 v{t2}, 15, v{L}"); s(f"v_xor_b32 v{t2}, v{t2}, v{t1}"); s(f"v_lshlrev_b32 v{t2}, 4, v{t2}")
        s(f"v_lshl_add_u32 v{t2}, v{t0}, 8, v{t2}"); s(f"v_lshl_add_u32 v{t2}, v{W}, 12, v{t2}")
        s(f"v_add_u32 v{vDK}, s91, v{t2}")
        s(f"v_bfe_u32 v{t1}, v{L}, 2, 2")
        s(f"v_and_b32 v{t2}, 3, v{L}"); s(f"v_lshlrev_b32 v{t2}, 4, v{t2}")
        s(f"v_lshl_add_u32 v{t3}, v{t0}, 6, v{t2}")
        s(f"v_lshl_add_u32 v{t2}, v{t1}, 8, v{t3}"); s(f"v_lshl_add_u32 v{t2}, v{W}, 12, v{t2}")
        s(f"v_add_u32 v{vDV}, s91, v{t2}")
        s(f"v_lshl_add_u32 v{t2}, v{W}, 4, v{t1}"); s(f"v_lshl_add_u32 v{t2}, v{t2}, 13, v{t3}")
        s("s_lshl_b32 s92, s88, 8"); s(f"v_add_u32 v{vDWQ}, s92, v{t2}")
        s(f"v_lshrrev_b32 v{t2}, 5, v{L}"); s(f"v_lshl_add_u32 v{t2}, v{t2}, 2, v{t1}"); s(f"v_lshl_add_u32 v{t2}, v{W}, 5, v{t2}")
        s(f"v_and_b32 v{t3}, 0x7f, v{t3}")
        s(f"v_lshl_add_u32 v{t2}, v{t2}, 10, v{t3}")
        s("s_lshl_b32 s92, s88, 17"); s(f"v_add_u32 v{vDWO}, s92, v{t2}")
        s(f"v_lshrrev_b32 v{t1}, 3, v{L}"); s(f"v_and_b32 v{t2}, 7, v{L}"); s(f"v_xor_b32 v{t2}, v{t2}, v{t1}"); s(f"v_lshlrev_b32 v{t2}, 4, v{t2}")
        s(f"v_lshl_add_u32 v{t1}, v{W}, 5, v{t1}"); s(f"v_lshl_add_u32 v{t2}, v{t1}, 10, v{t2}")
        s("s_lshl_b32 s92, s84, 17"); s(f"v_add_u32 v{vDX}, s92, v{t2}")
        s("s_lshl_b32 s92, s5, 4"); s("s_add_u32 s92, s92, s84"); s("s_lshl_b32 s92, s92, 3"); s("s_add_u32 s92, s92, s89"); s("s_lshl_b32 s92, s92, 17")
        s(f"v_lshlrev_b32 v{t2}, 4, v{L}"); s(f"v_lshl_add_u32 v{t2}, v{W}, 15, v{t2}"); s(f"v_add_u32 v{vST}, s92, v{t2}")
        s("s_waitcnt lgkmcnt(0)")
        def srd(d, p, n, delta=0):
            if delta:
                s(f"s_add_u32 s{d}, s{p}, {delta}"); s(f"s_addc_u32 s{d+1}, s{p+1}, 0"); s(f"s_and_b32 s{d+1}, s{d+1}, 0xffff")
            else:
                s(f"s_mov_b32 s{d}, s{p}"); s(f"s_and_b32 s{d+1}, s{p+1}, 0xffff")
            s(f"s_mov_b32 s{d+2}, {n - delta}"); s(f"s_mov_b32 s{d+3}, 0x20000")
        for q in range(4): srd(sX + 4 * q, 72, 2 << 20, q * (8192 - 1024))
        for q in range(4): srd(sWQ + 4 * q, 78, 4 << 20, q * (32768 - 1024))
        srd(sK, 74, 64 << 20); srd(sV, 76, 64 << 20)
        for q in range(4): srd(sWO + 4 * q, 80, 4 << 20, q * (8192 - 1024))
        srd(sWS, 82, WS)
        s(f"s_lshl_b32 s{sWL}, s{sWL}, 12")
        s("s_mov_b32 s3, s90")
        for i in range(8):
            s(f"s_add_u32 s{sT+i}, s3, {i}"); s(f"s_and_b32 s{sT+i}, s{sT+i}, 7"); s(f"s_lshl_b32 s{sT+i}, s{sT+i}, 7")
            s(f"s_lshl_b32 s{sT2+i}, s{sT+i}, 12"); s(f"s_mov_b32 s{sT3+i}, {i * 16384}")
        pre = o; o = []
        hf, lam, G, m = 247, 248, 249, 251
        u0, u1 = 252, 253
        s(f"v_lshrrev_b32 v{hf}, 5, v{L}"); s(f"v_and_b32 v{lam}, 15, v{L}"); s(f"v_bfe_u32 v{G}, v{L}, 4, 1")
        s(f"v_and_b32 v{u0}, 3, v{L}"); s(f"v_lshl_add_u32 v{u0}, v{G}, 2, v{u0}"); s(f"v_lshrrev_b32 v{u1}, 2, v{lam}")
        s(f"v_lshl_add_u32 v{u0}, v{u1}, 4, v{u0}"); s(f"v_xor_b32 v{m}, v{hf}, v{lam}"); s(f"v_lshlrev_b32 v{m}, 4, v{m}")
        s(f"v_lshl_add_u32 v{vLK}, v{u0}, 8, v{m}")
        s(f"v_lshlrev_b32 v{u1}, 6, v{u1}")
        s(f"v_lshl_add_u32 v{u0}, v{G}, 5, v{u1}"); s(f"v_and_b32 v{m}, 3, v{L}")
        s(f"v_lshl_add_u32 v{vLV}, v{m}, 3, v{u0}"); s(f"v_lshl_add_u32 v{vLV}, v{hf}, 12, v{vLV}")
        s(f"v_and_b32 v{m}, 1, v{L}"); s(f"v_lshl_add_u32 v{vLWQ}, v{m}, 4, v{u0}")
        s(f"v_bfe_u32 v{lam}, v{L}, 1, 1"); s(f"v_lshl_add_u32 v{vLWQ}, v{lam}, 3, v{vLWQ}"); s(f"v_lshl_add_u32 v{vLWQ}, v{hf}, 11, v{vLWQ}")
        s(f"v_lshl_add_u32 v{vLWO}, v{m}, 5, v{u1}"); s(f"v_lshl_add_u32 v{vLWO}, v{G}, 4, v{vLWO}")
        s(f"v_lshl_add_u32 v{vLWO}, v{lam}, 3, v{vLWO}"); s(f"v_lshl_add_u32 v{vLWO}, v{hf}, 9, v{vLWO}")
        s(f"v_and_b32 v{u0}, 31, v{L}"); s(f"v_and_b32 v{u1}, 7, v{L}"); s(f"v_xor_b32 v{u1}, v{u1}, v{hf}"); s(f"v_lshlrev_b32 v{u1}, 4, v{u1}")
        s(f"v_lshl_add_u32 v{vLX}, v{u0}, 7, v{u1}"); s(f"v_lshl_add_u32 v{vLX}, v{W}, 12, v{vLX}")
        s(f"s_mov_b32 s{sC}, {f32(math.log2(math.e) / math.sqrt(128.0))}")
        s(f"v_mov_b32 v{vT1}, {f32(self.thr)}")
        return pre, o

    def rare(self, which):
        Sx = SA if which == "A" else SB
        o = [f"L_rare{which}:", "s_nop 15",
             f"v_mov_b32 v{vT0}, v{vMX}", "s_nop 1", f"v_permlane32_swap_b32 v{vT0}, v{vMX}", "s_nop 1",
             f"v_max3_f32 v{vMX}, v{vMX}, v{vT0}, 0",
             f"v_exp_f32 v{vT0}, -v{vMX}", "s_nop 0"]
        for i in range(32): o.append(f"v_sub_f32 v{Sx+i}, v{Sx+i}, v{vMX}")
        for i in range(16): o.append(f"v_sub_f32 v{NEGM+i}, v{NEGM+i}, v{vMX}")
        for i in range(64): o.append(f"v_mul_f32 v{O+i}, v{vT0}, v{O+i}")
        o += [f"v_mul_f32 v{vL0}, v{vT0}, v{vL0}", f"v_mul_f32 v{vL1}, v{vT0}, v{vL1}", "s_nop 1", f"s_setpc_b64 s[{sRET}:{sRET+1}]"]
        return o

    def reduce_kernel(self):
        o = []; s = o.append
        s(".p2align 8"); s(".type red_kernel,@function"); s("red_kernel:")
        s("s_cmp_ge_u32 s2, 512"); s("s_cbranch_scc1 L_end2")
        s("s_load_dwordx2 s[4:5], s[0:1], 96"); s("s_load_dwordx2 s[6:7], s[0:1], 80")
        s("v_lshrrev_b32 v1, 6, v0"); s("v_and_b32 v2, 63, v0"); s("s_lshl_b32 s3, s2, 2"); s("v_add_u32 v1, s3, v1")
        s("v_lshrrev_b32 v3, 6, v1"); s("v_and_b32 v4, 63, v1")
        s("v_lshlrev_b32 v5, 20, v3"); s("v_lshl_add_u32 v5, v4, 11, v5"); s("v_lshl_add_u32 v5, v2, 4, v5")
        s("v_and_b32 v6, 15, v3"); s("v_lshlrev_b32 v6, 7, v6"); s("v_bfe_u32 v7, v1, 4, 2"); s("v_lshl_add_u32 v6, v7, 5, v6")
        s("v_and_b32 v7, 31, v2"); s("v_add_u32 v6, v6, v7"); s("v_lshlrev_b32 v6, 11, v6")
        s("v_lshrrev_b32 v7, 4, v3"); s("v_lshl_add_u32 v6, v7, 10, v6")
        s("v_and_b32 v7, 15, v1"); s("v_lshl_add_u32 v6, v7, 6, v6"); s("v_lshrrev_b32 v7, 5, v2"); s("v_lshl_add_u32 v6, v7, 5, v6")
        s("s_waitcnt lgkmcnt(0)")
        s("s_mov_b32 s8, s4"); s("s_and_b32 s9, s5, 0xffff"); s(f"s_mov_b32 s10, {32 << 20}"); s("s_mov_b32 s11, 0x20000")
        s("s_mov_b32 s12, s6"); s("s_and_b32 s13, s7, 0xffff"); s(f"s_mov_b32 s14, {4 << 20}"); s("s_mov_b32 s15, 0x20000")
        for mi in range(8):
            s(f"s_mov_b32 s16, {mi * 131072}")
            s(f"buffer_load_dwordx4 v[{8+8*mi}:{11+8*mi}], v5, s[8:11], s16 offen nt")
            s(f"buffer_load_dwordx4 v[{12+8*mi}:{15+8*mi}], v5, s[8:11], s16 offen offset:1024 nt")
        s("s_mov_b32 s17, 0xffff0000")
        for mi in range(8):
            s(f"s_waitcnt vmcnt({14 - 2 * mi})")
            for i in range(8):
                r = 8 + 8 * mi + i
                if mi == 0:
                    s(f"v_lshlrev_b32 v{72+2*i}, 16, v{r}"); s(f"v_and_b32 v{73+2*i}, s17, v{r}")
                else:
                    s(f"v_lshlrev_b32 v{88}, 16, v{r}"); s(f"v_and_b32 v{89}, s17, v{r}")
                    s(f"v_add_f32 v{72+2*i}, v{72+2*i}, v88"); s(f"v_add_f32 v{73+2*i}, v{73+2*i}, v89")
        for i in range(8): s(f"v_cvt_pk_bf16_f32 v{8+i}, v{72+2*i}, v{73+2*i}")
        s("buffer_store_dwordx4 v[8:11], v6, s[12:15], 0 offen")
        s("buffer_store_dwordx4 v[12:15], v6, s[12:15], 0 offen offset:16")
        s("L_end2:"); s("s_endpgm")
        return o

    def generate(self):
        self.build_units()
        seq = self.schedule()
        pre, post = self.setup()
        head = seq[:self.after_init_dma]; body = seq[self.after_init_dma:]
        body = self.lgkm_pass(body)
        head, _ = pad_hazards(head)
        body, npad = pad_hazards(body)
        self.npad = npad
        L = []
        L.append(f"; @launch kernel={NAME}_kernel grid=(256,1,1) block=(256,1,1) lds=163840")
        L.append(f"; @launch kernel=red_kernel grid=(512,1,1) block=(256,1,1) lds=0")
        L.append('.amdgcn_target "amdgcn-amd-amdhsa--gfx950"'); L.append(".text")
        L.append(f".globl {NAME}_kernel"); L.append(".p2align 8"); L.append(f".type {NAME}_kernel,@function"); L.append(f"{NAME}_kernel:")
        L += ["  " + x for x in pre]; L.append("  s_nop 4")
        L.append(text(head)); L += ["  " + x for x in post]; L.append("  s_nop 1")
        L.append(text(body))
        if self.stamps:
            L += ["  s_waitcnt vmcnt(0)", "  s_barrier", f"  s_cmp_lg_u32 s{sWL}, 0", "  s_cbranch_scc1 L_end1",
                  f"  s_memrealtime s[{sSTAMP+2}:{sSTAMP+3}]", "  s_waitcnt lgkmcnt(0)", "  v_mov_b32 v4, 0", "  s_mov_b64 exec, 1",
                  f"  s_lshl_b32 s{sTMP}, s2, 4", f"  s_add_u32 s{sTMP}, s{sTMP}, {WS - 256 * 16}"]
            L += [f"  v_mov_b32 v{8+i}, s{sSTAMP+i}" for i in range(4)]
            L += [f"  buffer_store_dwordx4 v[8:11], v4, {sr(sWS,4)}, s{sTMP} offen"]
        L.append("L_end1:"); L.append("  s_endpgm")
        for lab, w in self.tramps:
            L += [f"{lab}t:", f"  s_call_b64 s[{sRET}:{sRET+1}], L_rare{w}", f"  s_branch {lab}"]
        for w in "AB": L += self.rare(w)
        L += self.reduce_kernel()
        L.append('.section .rodata,"a"')
        for nm, nv, ao in ((f"{NAME}_kernel", 512, 256), ("red_kernel", 96, 96)):
            L += [".p2align 6", f".amdhsa_kernel {nm}", f"  .amdhsa_next_free_vgpr {nv}", "  .amdhsa_next_free_sgpr 102",
                  f"  .amdhsa_accum_offset {ao}", "  .amdhsa_group_segment_fixed_size 0", "  .amdhsa_kernarg_size 104",
                  "  .amdhsa_user_sgpr_count 2", "  .amdhsa_user_sgpr_kernarg_segment_ptr 1",
                  "  .amdhsa_system_sgpr_workgroup_id_x 1", ".end_amdhsa_kernel"]
        return "\n".join(L) + "\n"

if __name__ == "__main__":
    import argparse
    ap = argparse.ArgumentParser()
    ap.add_argument("-o", default="k1.s")
    ap.add_argument("--opt", default="")
    a = ap.parse_args()
    kw = eval(f"dict({a.opt})")
    g = Gen(**kw)
    t = g.generate()
    open(a.o, "w").write(t)
    print(a.o, "lines", t.count("\n"), "bytes", len(t), "overflow units", g.over, "pad states", g.npad, file=sys.stderr)
```

```python
import sys
def optimize(NM, dt, heavy, nosync, KV, WW, rel, syncs_at, miss, extra_at, Ls, Lh=300, cap=11, limit=10, keep=2, init=8, n_extra=2,
             hpen=6.0, verbose=False, two=None):
    S = len(Ls)
    lastq = {}
    for name, st in (("K", KV), ("W", WW)):
        for i, (t, q) in enumerate(st): lastq[t] = (name, i)
    def issue(t, ret, ismiss):
        t2 = list(t); r2 = []
        for s in range(S):
            r = ret[s]; n = len(r)
            if n >= cap and r[n - cap] > t2[s]: t2[s] = r[n - cap]
            enter = max(t2[s], r[n - 7] if n >= 7 else 0)
            x = max(enter + (Ls[s] if ismiss else Lh), (r[-1] if n else 0) + 64)
            r2.append((r + (x,))[-cap:])
        return tuple(t2), tuple(r2)
    t = tuple([0.0] * S); ret = tuple([()] * S); done = {}
    for i in range(init):
        tl, q = WW[i]; t, ret = issue(t, ret, miss[tl])
        if q == 3: done[tl] = tuple(r[-1] for r in ret)
    for i in range(n_extra): t, ret = issue(t, ret, True)
    states = {(0, init): [(0.0, t, ret, done, None)]}
    for g in range(-1, NM):
        new = {}
        need = syncs_at.get(g)
        for (kp, wp), lst in states.items():
            if need is not None:
                ok = True
                for tl in need:
                    nm, i = lastq[tl]
                    if (kp if nm == "K" else wp) <= i: ok = False; break
                if not ok: continue
            for (c, t, ret, done, path) in lst:
                if need is not None:
                    t = tuple(max([t[s]] + [done[tl][s] for tl in need]) for s in range(S))
                    done = {k: v for k, v in done.items() if k not in need}
                opts = [""]
                if nosync[g]:
                    k_ok = kp < len(KV) and rel[KV[kp][0]] <= g
                    w_ok = wp < len(WW) and rel[WW[wp][0]] <= g
                    if k_ok: opts.append("K")
                    if w_ok: opts.append("W")
                    if two is not None and two[g]:
                        if k_ok and kp + 1 < len(KV) and rel[KV[kp + 1][0]] <= g: opts.append("KK")
                        if w_ok and wp + 1 < len(WW) and rel[WW[wp + 1][0]] <= g: opts.append("WW")
                for o in opts:
                    t2, r2, d2, k2, w2 = t, ret, done, kp, wp
                    for ch in o:
                        tl, q = KV[k2] if ch == "K" else WW[w2]
                        t2, r2 = issue(t2, r2, miss[tl])
                        if q == 3:
                            d2 = dict(d2); d2[tl] = tuple(r[-1] for r in r2)
                        if ch == "K": k2 += 1
                        else: w2 += 1
                    for e in extra_at.get(g, ()): t2, r2 = issue(t2, r2, e == "m")
                    add = dt[g] + (hpen * len(o) if heavy[g] else 0)
                    t2 = tuple(x + add for x in t2)
                    cost = sum(t2) + 0.25 * sum(max(0, r2[s][-1] - t2[s]) for s in range(S))
                    L = new.setdefault((k2, w2), [])
                    L.append((cost, t2, r2, d2, (path, g, o) if o else path))
        best = min(l[0] for L in new.values() for l in L) if new else None
        assert best is not None, ("infeasible at gap", g)
        states = {}
        for k, L in new.items():
            L.sort(key=lambda x: x[0])
            L = [x for x in L[:keep] if x[0] < best + 2500 * S]
            if L: states[k] = L
        if len(states) > 400:
            items = sorted(states.items(), key=lambda kv: kv[1][0][0] - 60 * S * (kv[0][0] * 2.0 + kv[0][1]))
            states = dict(items[:400])
        if verbose and g % 256 == 0: print(g, len(states), int(best / S), file=sys.stderr)
    fin = states[(len(KV), len(WW))][0]
    plan = {}; p = fin[4]
    while p is not None:
        p, g, o = p[0], p[1], p[2]; plan[g] = o
    return plan, [int(x) for x in fin[1]]
```

```python
import sys, struct, math, re
from asmlib import *
NAME = "concat_heads__mha_block_cached__mha_block_cached__near_ridge"
WS = 289406976
B0, O, SS, B1, B2, NEGM, FR, XF = 0, 32, 96, 128, 160, 192, 208, 228
vDK, vDV, vDX, vDWQ, vDWO = 236, 237, 238, 239, 240
vLK, vLX, vLV, vLWQ, vLWO = 241, 245, 249, 250, 251
vLA, vLB, vMX, vSTAMP = 252, 253, 254, 255
sK, sV, sX, sWQ, sWO, sWS = 8, 12, 16, 32, 48, 64
sWL, sTMP, sC, sKV = 68, 69, 70, 71
sT, sT2, sT4 = 72, 80, 88
sRET, sSTAMP = 96, 98
sGRP, sPB, sOUTP = 3, 4, 6
LBASE = {"K": 0, "X": 2, "V": 4, "WQ": 6, "WO": 6}
FLAG_OFF = 40 << 20

def f32(x): return "0x%08x" % struct.unpack("<I", struct.pack("<f", x))[0]
def nbytes(x):
    t = x.t
    if x.k in ("mfma", "ds", "dma", "vmem"): return 8
    if x.k in ("label", "comment"): return 0
    if t.startswith(("v_cvt_pk", "v_max3", "v_accvgpr", "v_fma", "v_lshl_add", "v_writelane", "v_mbcnt")): return 8
    m = re.search(r", (\d+)(,|$)", t)
    if m and int(m.group(1)) > 64: return 8
    if "0x" in t: return 8
    return 4

P0a = "K0 Q k1 V0 K2 Q V1 k3 Q V2 K4 Q V3 k5 Q V4 K6 Q V5 k7 Q V6 Q V7"
P0b = "K0 Q k1 Q V0 K2 Q V1 k3 Q V2 K4 Q V3 k5 Q V4 K6 Q V5 k7 Q V6 V7"
P3a = "K0 W k1 V0 K2 W V1 k3 W V2 K4 W V3 k5 W V4 K6 W V5 k7 W V6 W V7"
PM44 = "K0 W W V0 K1 W W V1 K2 W W V2 K3 W W V3 K4 Q Q V4 K5 Q Q V5 K6 Q Q V6 K7 Q Q V7"
PM53 = "K0 W W k1 V0 W K2 W V1 k3 W V2 W K4 W V3 W V4 K5 Q Q Q V5 K6 Q Q Q V6 K7 Q Q V7"
PM53b = "K0 W W k1 V0 W K2 W V1 k3 W V2 W K4 W V3 W Q V4 K5 Q Q V5 Q K6 Q Q V6 K7 Q Q V7"
PM62 = "K0 W W k1 V0 K2 W V1 k3 W V2 K4 W V3 k5 W V4 W W V5 Q K6 Q Q Q V6 Q K7 Q Q Q V7"
ORDERS = {"B": [P0a, PM44, PM44, P3a], "C": [P0a, PM53, PM53, P3a], "D": [P0a, PM62, PM62, P3a], "E": [P0a, PM53b, PM53b, P3a],
          "F": [P0b, PM53b, PM53b, P3a]}

class Node:
    __slots__ = ("x", "lo", "hi", "deps", "cls", "done", "succ", "pos", "newgap")
    def __init__(self, x, lo, hi, deps=(), cls="valu", newgap=False):
        self.x = x; self.lo = lo; self.hi = hi; self.deps = [d for d in deps if d is not None]; self.cls = cls
        self.done = False; self.succ = []; self.pos = None; self.newgap = newgap

class Gen:
    def __init__(self, LA=4, NB=5, run=7, margin=300, kvflag=" nt", wflag="", stflag=" sc1", stamps=0, thr=10.0,
                 Lmiss=1100, Lhit=250, maxout=10, gapcyc=34, codepf=True, verbose=False, budget=24, order="A",
                 fuse=True, lazyw=0, lazykv=0, merge=True, opt=False, Ls=(1200, 1700), hpen=6.0, plan_=None, early=0, rings=None):
        self.__dict__.update(locals()); del self.__dict__["self"]
        self.units = []; self.tiles = []; self.stamp_names = ["start"]

    def plan(self):
        o = [("QP", 0, i) for i in range(8)]
        v = lambda b: [("v", b), ("v", b + 16)]
        self.Qb = {0: B0, 1: B2, 2: B0, 3: B2}
        self.OBb = {0: B0, 1: B2, 2: B0, 3: B2}
        self.QA = {0: v(B1) + v(B2), 1: v(B2) + [("a", 0), ("a", 16)], 2: v(B0) + v(B1), 3: v(B2) + v(B1)}
        Sb = {}
        if self.order == "A":
            o += [("QK", 0, 0), ("QP", 1, 0), ("QK", 0, 1), ("QP", 1, 1), ("PV", 0, 0)]
            for j in range(1, 7): o += [("QK", 0, j + 1), ("QP", 1, j + 1), ("PV", 0, j)]
            for j in range(8): Sb[(0, j)] = B1 if j % 2 == 0 else SS
            for h in (1, 2):
                o += [("QK", h, 0), ("PV", h - 1, 7), ("QK", h, 1), ("WO", h - 1, 0), ("WO", h - 1, 1), ("WO", h - 1, 2), ("PV", h, 0),
                      ("QK", h, 2), ("WO", h - 1, 3), ("WO", h - 1, 4), ("PV", h, 1),
                      ("WO", h - 1, 5), ("WO", h - 1, 6), ("WO", h - 1, 7), ("PV", h, 2)]
                for j in range(3, 7): o += [("QK", h, j), ("QP", h + 1, 2 * j - 6), ("QP", h + 1, 2 * j - 5), ("PV", h, j)]
                o += [("QK", h, 7)]
                for j in range(8): Sb[(h, j)] = B1 if j in (0, 2) else SS
            o += [("QK", 3, 0), ("PV", 2, 7), ("QK", 3, 1), ("WO", 2, 0), ("PV", 3, 0)]
            for j in range(1, 7): o += [("QK", 3, j + 1), ("WO", 2, j), ("PV", 3, j)]
            o += [("WO", 2, 7), ("PV", 3, 7)]
            for j in range(8): Sb[(3, j)] = B1 if j % 2 == 0 else SS
            o += [("WO", 3, u) for u in range(8)]
        else:
            P = ORDERS[self.order]
            for h in range(4):
                wi = qi = 0
                for tok in P[h].split():
                    hh = h
                    if tok.endswith("+"): hh = h + 1; tok = tok[:-1]
                    if tok.endswith("-"): hh = h - 1; tok = tok[:-1]
                    if tok[0] in "Kk":
                        o.append(("QK", hh, int(tok[1]))); Sb[(hh, int(tok[1]))] = B1 if tok[0] == "k" else SS
                    elif tok[0] == "V": o.append(("PV", hh, int(tok[1])))
                    elif tok == "W": o.append(("WO", h - 1, wi)); wi += 1
                    elif tok == "Q": o.append(("QP", h + 1, qi)); qi += 1
            o += [("WO", 3, u) for u in range(8)]
        assert len(o) == 128 and len(set(o)) == 128
        self.Sb = Sb
        return o

    def ring(self, kind, h, j):
        R = self.rings or {}
        kx = R.get("kx", 2)
        if kind == "K": return [0, 1, 2, 3] if (h == 3 or (h >= 1 and j <= kx)) else [0, 1]
        if kind == "V":
            if h == 3 and j >= 5: return [4, 5]
            if h in (1, 2) and j >= R.get("v2", 9): return [4, 5]
            if h >= 2 and j == 0 and R.get("v2", 9) < 9: return [4, 5]
            return [4, 5, 6]
        if kind == "X": return [2, 3, 5] if h == 0 else [2, 3]
        if kind == "WQ": return [6, 7, 8, 9] if (h == 0 or (h >= 2 and R.get("v2", 9) < 9 and j >= R.get("w4", 1))) else [7, 8, 9]
        return [6, 7, 8, 9] if h == 3 else [7, 8, 9]

    def tile(self, kind, head, idx, lastuse):
        n = len(self.tiles)
        ring = self.ring(kind, head, idx)
        slot = min(ring, key=lambda s: self.slotlast.get(s, (-1, None))[0])
        prev = self.slotlast.get(slot, (-1, None))[1]
        self.slotlast[slot] = (lastuse, n)
        self.tiles.append(dict(kind=kind, head=head, idx=idx, n=n, slot=slot, prev=prev, off=(slot - LBASE[kind]) * 16384))
        assert 0 <= slot - LBASE[kind] < 4
        return n

    def build_units(self):
        U = self.units; self.slotlast = {}
        for k, (kind, h, j) in enumerate(self.plan()):
            g0 = 16 * k; mf = []
            if kind == "QK":
                t = self.tile("K", h, j, g0 + 15); Sx = self.Sb[(h, j)]; off = self.tiles[t]["off"]; tl = [t]
                for kb in range(2):
                    for s in range(8):
                        c = None if s else ("0" if j == 0 else "negm")
                        mf.append(dict(D=("v", Sx + 16 * kb), B=self.Qb[h] + 4 * s, C=c, rd=("B", t, vLK + (s & 3), off + (s >> 2) * 8192 + kb * 2048)))
            elif kind == "PV":
                t = self.tile("V", h, j, g0 + 15); Sx = self.Sb[(h, j)]; off = self.tiles[t]["off"]; tl = [t]
                for ks in range(4):
                    for db in range(4):
                        c = "0" if (j == 0 and ks == 0) else None
                        mf.append(dict(D=("v", O + 16 * db), B=Sx + 4 * ks, C=c, rd=("T", t, vLV, [off + (ks + 8 * z) * 1024 + db * 256 for z in range(2)])))
            elif kind == "QP":
                tw = self.tile("WQ", h, j, g0 + 15); tx = self.tile("X", h, j, g0 + 12); off = self.tiles[tw]["off"]; tl = [tw, tx]
                for s in range(4):
                    for db in range(4):
                        c = "0" if (j == 0 and s == 0) else None
                        m = dict(D=self.QA[h][db], B=XF + 4 * (s % 2), C=c, rd=("T", tw, vLWQ, [off + (4 * s + z) * 1024 + db * 256 for z in range(2)]))
                        if db == 0: m["xr"] = (tx, vLX + s, self.tiles[tx]["off"])
                        mf.append(m)
            else:
                t = self.tile("WO", h, j, g0 + 15); off = self.tiles[t]["off"]; tl = [t]
                for s in range(8):
                    for nb in range(2):
                        c = "0" if (h == 0 and s == 0) else None
                        mf.append(dict(D=("a", 16 * (2 * j + nb)), B=self.OBb[h] + 4 * s, C=c, rd=("T", t, vLWO, [off + (4 * s + 2 * z) * 512 + nb * 256 for z in range(2)])))
            U.append(dict(kind=kind, h=h, j=j, tiles=tl, mf=mf, start=g0))
        self.NM = 16 * len(U)
        self.find = {(u["kind"], u["h"], u["j"]): u["start"] for u in U}

    def mfma(self, m, g):
        fb = FR + 4 * (g % self.NB)
        k, d = m["D"]
        dt = vr(d, 16) if k == "v" else ar(d, 16)
        dw = V(d, 16) if k == "v" else A(d, 16)
        if m["C"] == "0": ct, cr = "0", []
        elif m["C"] == "negm": ct, cr = vr(NEGM, 16), V(NEGM, 16)
        else: ct, cr = dt, dw
        return I(f"v_mfma_f32_32x32x16_bf16 {dt}, {vr(fb,4)}, {vr(m['B'],4)}, {ct}", "mfma",
                 r=V(fb, 4) + V(m["B"], 4) + cr, w=dw, srcc=cr)

    def reads(self, m, g):
        fb = FR + 4 * (g % self.NB); o = []
        if "xr" in m:
            tx, a, off = m["xr"]
            o.append(I(f"ds_read_b128 {vr(m['B'],4)}, v{a} offset:{off}", "ds", r=V(a), w=V(m["B"], 4), tag=tx, c=4))
        k, t, a, off = m["rd"]
        if k == "B":
            o.append(I(f"ds_read_b128 {vr(fb,4)}, v{a} offset:{off}", "ds", r=V(a), w=V(fb, 4), tag=t, c=4))
        else:
            for z in range(2):
                assert off[z] < 65536
                o.append(I(f"ds_read_b64_tr_b16 {vr(fb + 2 * z, 2)}, v{a} offset:{off[z]}", "ds", r=V(a), w=V(fb + 2 * z, 2), tag=t, c=4))
        return o

    def dma_ops(self, n):
        t = self.tiles[n]; k = t["kind"]
        vd = {"K": vDK, "V": vDV, "X": vDX, "WQ": vDWQ, "WO": vDWO}[k]
        post = []; step = 0
        if t["idx"] == 7 and k != "X" and t["head"] < 3:
            step = {"WQ": 4 * 256}.get(k, 4 * 131072)
            post.append(I(f"v_add_u32 v{vd}, {step}, v{vd}", "valu", r=V(vd), w=V(vd), c=4))
        m0 = [I(f"s_add_u32 m0, s{sWL}, {t['slot'] * 16384}", "salu", r=S(sWL), w=["m0", "scc"], c=4)]
        if k in "KV": m0.append(I(f"s_lshl_b32 s{sKV}, s{sT + t['idx']}, 7", "salu", w=S(sKV) + ["scc"], c=4))
        so = f"s{sKV}" if k in "KV" else f"s{ {'X': sT, 'WQ': sT2, 'WO': sT4}[k] + t['idx'] }"
        d = []
        for q in range(4):
            srd = {"K": sK, "V": sV, "X": sX + 4 * q, "WQ": sWQ + 4 * q, "WO": sWO + 4 * q}[k]
            fl = self.kvflag if k in "KV" else self.wflag
            off = f" offset:{1024 * q}" if q else ""
            d.append(I(f"buffer_load_dwordx4 v{vd}, {sr(srd,4)}, {so} offen{off}{fl} lds", "dma",
                       r=V(vd) + S(srd, 4) + ["m0"], c=8, tag=n))
        return m0, d, post

    def build_nodes(self):
        N = []; F = self.find; self.tramps = []; self.rares = set()
        def vop(t, r, w, k="valu", c=4): return I(t, k, r=r, w=w, c=c)
        def cvt(d, a, b=None): return vop(f"v_cvt_pk_bf16_f32 v{d}, v{a}, v{a+1}", V(a, 2), V(d), c=5)
        def add(x, lo, hi, deps=(), cls="valu", newgap=False):
            if lo > hi: lo = hi
            n = Node(x, lo, hi, deps, cls, newgap); N.append(n); return n
        D = 3
        BIG = self.NM - 1
        mxfree = None
        for h in range(4):
            vL = vLA if h % 2 == 0 else vLB; vLo = vLB if h % 2 == 0 else vLA
            qb = self.Qb[h]; qs = F[("QK", h, 0)]; lo0 = F[("QP", h, 7)] + 12
            prev = None
            order = list(range(32))
            inplace = [i for i in order if self.QA[h][i // 8][0] == "v" and qb <= self.QA[h][i // 8][1] < qb + 32]
            for i in order:
                kind, base = self.QA[h][i // 8]; s0 = base + 2 * (i % 8)
                lo = lo0 + i // 8 + D
                hi = qs + i // 4 - 2
                sb = self.Sb[(h, 0)]
                if kind == "v" and sb <= s0 < sb + 32: hi = min(hi, qs + (8 if s0 >= sb + 16 else 0) - 1)
                hi = max(hi, min(lo, qs + i // 4 - 1) if not (kind == "v" and sb <= s0 < sb + 32) else hi)
                if kind == "a":
                    t0 = XF + 2 * (i % 4) if False else None
                    a = add(vop(f"v_accvgpr_read_b32 v{qb+i}, a{s0}", A(s0), V(qb + i), c=5), lo, hi, [prev])
                    b = add(vop(f"v_accvgpr_read_b32 v{vL}, a{s0+1}", A(s0 + 1), V(vL), c=5), lo, hi, [a])
                    a = add(vop(f"v_mul_f32 v{qb+i}, s{sC}, v{qb+i}", V(qb + i) + S(sC), V(qb + i)), lo, hi, [b])
                    b = add(vop(f"v_mul_f32 v{vL}, s{sC}, v{vL}", V(vL) + S(sC), V(vL)), lo, hi, [a])
                    prev = add(vop(f"v_cvt_pk_bf16_f32 v{qb+i}, v{qb+i}, v{vL}", V(qb + i) + V(vL), V(qb + i), c=5), lo, hi, [b])
                else:
                    a = add(vop(f"v_mul_f32 v{s0}, s{sC}, v{s0}", V(s0) + S(sC), V(s0)), lo, hi, [prev])
                    b = add(vop(f"v_mul_f32 v{s0+1}, s{sC}, v{s0+1}", V(s0 + 1) + S(sC), V(s0 + 1)), lo, hi, [a])
                    prev = add(cvt(qb + i, s0), lo, hi, [b])
            qdone = prev
            lastadd = None
            for j in range(8):
                Sx = self.Sb[(h, j)]; qk = F[("QK", h, j)]; pv = F[("PV", h, j)]
                l0 = qk + 7 + D; l1 = qk + 15 + D
                nxt = F[("QK", h, j + 1)] if j < 7 else BIG
                mx = [vop(f"v_max3_f32 v{vMX}, v{Sx}, v{Sx+1}, v{Sx+2}", V(Sx, 3), V(vMX), c=5)]
                for i in range(3, 31, 2):
                    mx.append(vop(f"v_max3_f32 v{vMX}, v{vMX}, v{Sx+i}, v{Sx+i+1}", V(vMX) + V(Sx + i, 2), V(vMX), c=5))
                mx.append(vop(f"v_max_f32 v{vMX}, v{vMX}, v{Sx+31}", V(vMX) + V(Sx + 31), V(vMX)))
                prev = mxfree
                for i, o in enumerate(mx): prev = add(o, l0 if i < 7 else l1, BIG, [prev])
                if j == 0:
                    tmp = NEGM + 15
                    ln = l1 if h == 0 else max(l1, F[("QK", h - 1, 7)] + 8 + D)
                    prev = add(vop(f"v_mov_b32 v{tmp}, v{vMX}", V(vMX), V(tmp)), ln, BIG, [prev])
                    prev = add(vop(f"v_permlane32_swap_b32 v{tmp}, v{vMX}", V(tmp) + V(vMX), V(tmp) + V(vMX), k="perm"), ln, BIG, [prev], newgap=True)
                    prev = add(vop(f"v_max_f32 v{vMX}, v{vMX}, v{tmp}", V(vMX) + V(tmp), V(vMX)), ln, BIG, [prev])
                    gate = None
                    for i in range(16):
                        prev = add(vop(f"v_sub_f32 v{NEGM+i}, 0, v{vMX}", V(vMX), V(NEGM + i)), ln, nxt - 2, [prev])
                        if i == 0: gate = prev
                    mxfree = prev
                else:
                    lab = f"L_r{h}_{j}"
                    blo = max(l1, F[("PV", h, j - 1)] + 15)
                    prev = add(vop(f"v_cmp_lt_f32 vcc, {f32(self.thr)}, v{vMX}", V(vMX), ["vcc"]), l1, BIG, [prev])
                    gate = add(I(f"s_cbranch_vccnz {lab}t", "branch", r=["vcc"], c=4, tag=lab), blo, nxt - 1, [prev, lastadd], cls="scalar")
                    self.tramps.append((lab, Sx, vL)); self.rares.add((Sx, vL))
                    mxfree = gate
                pe = gate; pa = lastadd if j else qdone
                for p in range(16):
                    a = Sx + 2 * p; hi = pv + 4 * (p // 4) - 2
                    es = []
                    for r in (a, a + 1):
                        if j == 0: pe = add(vop(f"v_add_f32 v{r}, v{r}, v{NEGM}", V(r) + V(NEGM), V(r)), l1, hi, [pe])
                        pe = add(vop(f"v_exp_f32 v{r}, v{r}", V(r), V(r), k="trans", c=8), l1, hi, [pe]); es.append(pe)
                    if j == 0 and p == 0:
                        pa = add(vop(f"v_add_f32 v{vL}, v{a}, v{a+1}", V(a, 2), V(vL)), l1, hi, [pa] + es)
                    else:
                        pa = add(vop(f"v_add_f32 v{vL}, v{vL}, v{a}", V(a) + V(vL), V(vL)), l1, hi, [pa, es[0]])
                        pa = add(vop(f"v_add_f32 v{vL}, v{vL}, v{a+1}", V(a + 1) + V(vL), V(vL)), l1, hi, [pa, es[1]])
                    pa = add(cvt(Sx + p, a), l1, hi, [pa])
                lastadd = pa
            pv7 = F[("PV", h, 7)]; ws = F[("WO", h, 0)]; ob = self.OBb[h]; tmp = self.Sb[(h, 7)] + 31
            prev = add(vop(f"v_mov_b32 v{tmp}, v{vL}", V(vL), V(tmp)), pv7, pv7 + 13, [lastadd])
            prev = add(vop(f"v_permlane32_swap_b32 v{tmp}, v{vL}", V(vL) + V(tmp), V(vL) + V(tmp), k="perm"), pv7, pv7 + 14, [prev], newgap=True)
            prev = add(vop(f"v_add_f32 v{vL}, v{vL}, v{tmp}", V(vL) + V(tmp), V(vL)), pv7, pv7 + 14, [prev])
            prev = add(vop(f"v_rcp_f32 v{vL}, v{vL}", V(vL), V(vL), k="trans", c=8), pv7, BIG, [prev])
            for i in range(32):
                s0 = O + 2 * i; lo = pv7 + 12 + i // 8 + D; dl = ws + 2 * (i // 4)
                hi = max(dl - 2, min(lo, dl - 1))
                a = add(vop(f"v_mul_f32 v{s0}, v{vL}, v{s0}", V(s0) + V(vL), V(s0)), lo, hi, [prev])
                b = add(vop(f"v_mul_f32 v{s0+1}, v{vL}, v{s0+1}", V(s0 + 1) + V(vL), V(s0 + 1)), lo, hi, [a])
                prev = add(cvt(ob + i, s0), lo, hi, [b])
        vST = vDK
        l = F[("QK", 3, 7)]
        prev = add(vop(f"v_mbcnt_lo_u32_b32 v{vST}, -1, 0", [], V(vST), c=5), l, l + 16)
        prev = add(vop(f"v_mbcnt_hi_u32_b32 v{vST}, -1, v{vST}", V(vST), V(vST), c=5), l, l + 16, [prev])
        prev = add(vop(f"v_lshlrev_b32 v{vST}, 4, v{vST}", V(vST), V(vST)), l, l + 16, [prev])
        prev = add(vop(f"v_add_u32 v{vST}, s{sPB}, v{vST}", V(vST), V(vST)), l, l + 16, [prev])
        l = F[("PV", 3, 7)]
        p2 = add(vop(f"v_mov_b32 v{vDX}, 1", [], V(vDX)), l, l + 16)
        p2 = add(vop(f"v_mov_b32 v{vDV}, 0x7fffff00", [], V(vDV)), l, l + 16, [p2])
        p2 = add(vop(f"v_writelane_b32 v{vDV}, s5, 0", V(vDV), V(vDV), c=5), l, l + 16, [p2])
        l = F[("QK", 3, 3)]
        p2 = add(vop(f"v_mov_b32 v{vDWQ}, s{sGRP}", [], V(vDWQ)), l, l + 8)
        self.hs_load = add(I(f"global_load_dword v{vDWQ}, v{vDWQ}, s[0:1] sc1", "vmem", r=V(vDWQ), w=V(vDWQ), c=8, tag="hs"), l, l + 12, [p2], cls="mem")
        self.slice_last = {}
        for u in range(7):
            lo = min(F[("WO", 3, u)] + 15 + D, BIG); hi = min(lo + 20, BIG)
            sh = 10
            prev = add(I(f"s_lshl_b32 s{sTMP}, s{sT4+u}, {sh}", "salu", r=S(sT4 + u), w=S(sTMP) + ["scc"], c=4), lo, hi, [prev])
            for nb in range(2):
                ab = 16 * (2 * u + nb); tb = O + 16 * ((2 * u + nb) % 4); pb = B0 + 8 * ((2 * u + nb) % 4)
                for uu in range(2):
                    for i in range(4 * uu, 4 * uu + 4):
                        prev = add(vop(f"v_accvgpr_read_b32 v{tb+2*i}, a{ab+2*i}", A(ab + 2 * i), V(tb + 2 * i), c=5), lo, hi, [prev])
                        prev = add(vop(f"v_accvgpr_read_b32 v{tb+2*i+1}, a{ab+2*i+1}", A(ab + 2 * i + 1), V(tb + 2 * i + 1), c=5), lo, hi, [prev])
                        prev = add(cvt(pb + i, tb + 2 * i), lo, hi, [prev])
                    d = pb + 4 * uu
                    st = add(I(f"buffer_store_dwordx4 {vr(d,4)}, v{vST}, {sr(sWS,4)}, s{sTMP} offen offset:{nb*2048+uu*1024}{self.stflag}",
                               "vmem", r=V(d, 4) + V(vST) + S(sWS, 4) + S(sTMP), c=8, tag="store", srcc=V(d, 4)), lo, hi, [prev], cls="mem")
                    if nb == 1 and uu == 1: prev = st; self.slice_last[u] = st
        for n in N:
            for d in n.deps: d.succ.append(n)
        for n in reversed(N):
            for s_ in n.succ:
                n.hi = min(n.hi, s_.hi - (1 if (s_.newgap or s_.cls != "valu") else 0))
            if n.lo > n.hi: n.lo = n.hi
        return N

    def schedule(self):
        LA = self.LA; U = self.units; tiles = self.tiles
        M = [(u, i, m) for u in U for i, m in enumerate(u["mf"])]
        last = {}
        for g, (u, i, m) in enumerate(M):
            last[m["rd"][1]] = g
            if "xr" in m: last[m["xr"][0]] = g
        syncs = {}; merged = False
        for k, u in enumerate(U):
            if self.merge and k and not merged and u["kind"] in ("QK", "PV") and U[k - 1]["kind"] in ("QK", "PV") and k > 9:
                syncs[U[k - 1]["start"]] += u["tiles"]; merged = True
            else:
                syncs[u["start"]] = list(u["tiles"]); merged = False
        needgap = {t: g - LA for g, ts in syncs.items() for t in ts}
        N = self.build_nodes()
        N.sort(key=lambda n: n.lo)
        active = []; ni = 0
        out = []; vm = []; ret = []; now = [0]; dsq = []
        def ismiss(n):
            t = tiles[n]
            if t["kind"] in "KV": return True
            if t["idx"] == 0 and t["kind"] != "X": return True
            return t["head"] == 0 and t["kind"] == "X" and t["idx"] < 2
        def model_issue(lat):
            i = len(ret)
            enter = max(now[0], ret[i - 7] if i >= 7 else 0)
            ret.append(max(enter + lat, (ret[-1] if ret else 0) + 64))
        def outstanding(): return sum(1 for r in ret[-24:] if r > now[0])
        freed = set(); soon = []
        KV = [(n, q) for n in sorted((t["n"] for t in tiles if t["kind"] in "KV"), key=lambda n: (needgap[n], n)) for q in range(4)]
        WW = [(n, q) for n in sorted((t["n"] for t in tiles if t["kind"] not in "KV"), key=lambda n: (needgap[n], n)) for q in range(4)]
        kvp = [0]; wp = [0]; inrun = [0]; m0tile = [None]; lastkv = [0]; dcache = {}
        def emit(x):
            out.append(x)
            if x.k == "dma":
                vm.append(x.tag); model_issue(self.Lmiss if ismiss(x.tag) else self.Lhit)
                if tiles[x.tag]["kind"] in "KV": lastkv[0] = ret[-1]
            elif x.k == "vmem": vm.append(x); model_issue(self.Lhit)
            elif x.k == "ds": dsq.append(set(x.w))
        def slot_free(n, g):
            p = tiles[n]["prev"]
            if p is None: return True
            if tiles[n]["kind"] == "X" and tiles[p]["kind"] == "X": return last[p] <= g
            return p in freed
        def tneed(n, g): return now[0] + (needgap[n] - g) * self.gapcyc
        def pick(g, force=None, heavy=False):
            kv = KV[kvp[0]] if kvp[0] < len(KV) else None
            w = WW[wp[0]] if wp[0] < len(WW) else None
            kv_ok = kv is not None and slot_free(kv[0], g)
            w_ok = w is not None and slot_free(w[0], g)
            def take_kv():
                kvp[0] += 1; inrun[0] += 1
                if inrun[0] >= self.run: inrun[0] = 0
                return kv
            def take_w():
                wp[0] += 1; inrun[0] = 0; return w
            if force is not None:
                if any(tiles[t_]["kind"] in "KV" and vm.count(t_) < 4 for t_ in force) and kv_ok: return take_kv()
                if w_ok: return take_w()
                return None
            if inrun[0] > 0 and kv_ok: return take_kv()
            inrun[0] = 0
            avail = 0
            while kvp[0] + avail < len(KV) and avail < self.run and slot_free(KV[kvp[0] + avail][0], g): avail += 1
            full = avail >= self.run or (avail and kvp[0] + avail == len(KV))
            tail = max(now[0], ret[-1] if ret else 0)
            run_end = max(now[0] + self.Lmiss, tail) + 64 * self.run
            kv_urgent = kv_ok and tneed(kv[0], g) < run_end + self.margin
            late = None; tt = run_end
            for k in range(wp[0], min(wp[0] + 16, len(WW))):
                tt += 64
                if tneed(WW[k][0], g) < tt + self.margin: late = WW[k][0]; break
            if late is not None and not (kv_urgent and needgap[kv[0]] < needgap[late]):
                return take_w() if w_ok else None
            if (full or kv_urgent) and kv_ok and (lastkv[0] <= now[0] + self.Lmiss // 2 or not w_ok):
                if heavy and self.lazykv and tneed(kv[0], g) - now[0] > self.lazykv: return None
                return take_kv()
            if w_ok:
                if heavy and self.lazyw and tneed(w[0], g) - now[0] > self.lazyw: return None
                return take_w()
            return None
        def dma_for(p):
            n, q = p
            if n not in dcache: dcache[n] = self.dma_ops(n)
            m0, d, post = dcache[n]
            pre = list(m0) if m0tile[0] != n else []
            m0tile[0] = n
            return pre, d[q], (post if q == 3 else [])
        stall = 0; postv = []; est = 0
        self.trace = []; self.ismiss = ismiss; self.info = {}; self.rel = {}; self.KV = KV; self.WW = WW
        self.syncs_at = {max(g_ - LA, -1): ts for g_, ts in syncs.items()}
        for _ in range(8):
            pre, d, post = dma_for(pick(-1))
            for x in pre: emit(x)
            emit(d)
        self.after_init_dma = len(out)
        for _ in range(self.n_extra_vmem): vm.append("pf"); model_issue(self.Lmiss)
        flagged = set(); self.unit_est = []
        def ready(n, g): return n.lo <= g and all(d.done for d in n.deps)
        for g in range(-1, self.NM):
            used = 0; nb0 = len(out)
            for gg, n in soon:
                if gg <= g: freed.add(n)
            while ni < len(N) and N[ni].lo <= g: active.append(N[ni]); ni += 1
            active = [n for n in active if not n.done]
            active.sort(key=lambda n: n.hi)
            if g >= 0:
                if self.stamps and M[g][1] == 0 and self.want_stamp(M[g][0]):
                    for x in self.stamp(f"{M[g][0]['kind']}{M[g][0]['h']}_{M[g][0]['j']}"): out.append(x)
                    dsq.clear()
                emit(self.mfma(M[g][2], g))
            scal = []; lg = None
            if g + 1 < self.NM and g >= 0:
                touch = set(self.mfma(M[g + 1][2], g + 1).r)
                idx = max([j for j, w in enumerate(dsq) if w & touch], default=-1)
                if idx >= 0:
                    lg = len(dsq) - 1 - idx; del dsq[:idx + 1]
            tg = [g + LA] if g >= 0 else list(range(0, LA))
            sync = [r for r in tg if r in syncs and r < self.NM]
            vmw = None; newflags = []; hooks = []
            if sync:
                need = syncs[sync[0]]
                while not all(vm.count(t_) == 4 for t_ in need):
                    p = pick(g, force=need); assert p is not None, ("deadlock", g, need)
                    pre, d, post = dma_for(p)
                    for x in pre: emit(x)
                    emit(d); postv += post
                    if self.verbose: print("forced dma at", g, need, file=sys.stderr)
                idx = max(i for i, tg_ in enumerate(vm) if tg_ in need)
                if self.fuse:
                    for u, st in self.slice_last.items():
                        if st.done and u not in flagged and g - st.pos >= 14:
                            idx = max(idx, vm.index(st.x)); newflags.append(u); flagged.add(u)
                if sync[0] == min(s_ for s_ in syncs if s_ >= self.find[("QK", 3, 6)]):
                    assert self.hs_load.done and vm.index(self.hs_load.x) <= idx
                    hooks = [I(f"v_readfirstlane_b32 s{sTMP}, v{vDWQ}", "valu", r=V(vDWQ), w=S(sTMP), tag="rfl", c=4),
                             I(f"s_cmp_lt_u32 s{sTMP}, 8", "salu", r=S(sTMP), w=["scc"], c=4),
                             I("s_cbranch_scc1 L_hs_slow", "branch", c=4), I("L_hs_ok:", "label")]
                if sync[0] == 48:
                    assert idx >= 8 + self.n_extra_vmem
                    hooks = [I(f"s_cmp_lg_u32 s{sWL}, 0", "salu", w=["scc"], c=4), I("s_cbranch_scc1 L_noat", "branch", c=4),
                             I("s_mov_b64 exec, 1", "salu", c=4),
                             I(f"global_atomic_add v{NEGM}, v{NEGM+1}, s[0:1] sc1", "other", c=8),
                             I("s_mov_b64 exec, -1", "salu", c=4), I("L_noat:", "label")]
                vmw = min(63, len(vm) - 1 - idx)
                if ret[idx] > now[0]:
                    if self.verbose: print(f"model stall {int(ret[idx]-now[0])} at gap {g} unit {M[sync[0]][0]['kind']}{M[sync[0]][0]['h']}_{M[sync[0]][0]['j']}", file=sys.stderr)
                    stall += ret[idx] - now[0]; now[0] = ret[idx]
            if lg is not None or vmw is not None:
                w = "s_waitcnt" + (f" vmcnt({vmw})" if vmw is not None else "") + (f" lgkmcnt({lg})" if lg is not None else "")
                scal.append(I(w, "wait", c=4))
            if sync:
                scal.append(I("s_barrier", "barrier", c=20))
                for n, lg_ in last.items():
                    if lg_ <= g: freed.add(n)
                    elif self.early and lg_ - LA < g: soon.append((max(lg_, g + self.early), n))
            for n in active:
                if n.cls == "scalar" and ready(n, g):
                    scal.append(n.x); scal.append(I(f"{n.x.tag}:", "label")); n.done = True; n.pos = g
            rd = []
            for r in tg:
                if r < self.NM: rd += self.reads(M[r][2], r)
            heavy = len(rd) >= 2 and any(n.cls == "valu" and ready(n, g) for n in active)
            dm = None
            dm2 = []
            if self.plan_ is not None:
                for ci, ch in enumerate(self.plan_.get(g, "")):
                    if ch == "K": p = KV[kvp[0]]; kvp[0] += 1
                    else: p = WW[wp[0]]; wp[0] += 1
                    assert slot_free(p[0], g) and not sync
                    pre, d_, post = dma_for(p)
                    if ci == 0: scal += pre; dm = d_
                    else:
                        dep = [x for x in postv if x.w & d_.r]
                        postv = [x for x in postv if not (x.w & d_.r)]
                        dm2 += dep + pre + [d_]
                    postv += post
            elif not sync and outstanding() < self.maxout:
                p = pick(g, heavy=heavy)
                if p is not None:
                    pre, dm, post = dma_for(p); scal += pre; postv += post
            self.info[g] = dict(sync=bool(sync), heavy=heavy, nrd=len(rd))
            for t_ in tiles:
                if t_["n"] not in self.rel and slot_free(t_["n"], g): self.rel[t_["n"]] = g
            firsts = True
            for x in scal:
                out.append(x)
                if x.k != "label":
                    if not firsts or x.k == "barrier": used += x.c
                    firsts = False
            for x in rd: emit(x); used += x.c
            if g < 0:
                touch = set(self.mfma(M[0][2], 0).r)
                idx = max(j for j, w in enumerate(dsq) if w & touch)
                first_wait = I(f"s_waitcnt lgkmcnt({len(dsq) - 1 - idx})", "wait"); del dsq[:idx + 1]
            assert len(dsq) <= 15
            if dm is not None: emit(dm); used += dm.c
            for x in dm2: emit(x); used += x.c
            for u in newflags:
                for x in self.flag_ops(u): emit(x); used += x.c
            if dm is None:
                for n in active:
                    if n.cls == "mem" and not n.done and ready(n, g):
                        emit(n.x); used += n.x.c; n.done = True; n.pos = g; break
            must = hooks + list(postv); postv = []
            for x in must: emit(x); used += x.c
            byts = sum(nbytes(x) for x in out[nb0:])
            while True:
                cand = None
                for n in active:
                    if n.done or not ready(n, g): continue
                    forced = n.hi <= g
                    if n.cls != "valu" and not forced: continue
                    if n.newgap and any(d.pos == g for d in n.deps) and not forced: continue
                    fits = used + n.x.c <= self.budget + 1 and byts + nbytes(n.x) <= 50
                    adj = out[-1].k == "trans" and n.x.k != "trans" and (out[-1].w & n.x.r)
                    if forced and not adj: cand = n; break
                    if forced and cand is None: cand = n; continue
                    if fits and not adj and cand is None: cand = n; break
                    if cand is not None and not adj and n.cls == "valu": cand = n; break
                if cand is None: break
                emit(cand.x); used += cand.x.c; byts += nbytes(cand.x); cand.done = True; cand.pos = g
                if cand.x.k == "branch": out.append(I(f"{cand.x.tag}:", "label"))
            if g < 0: out.append(first_wait)
            dt = max(32.7, 8 + used, byts / 1.55)
            now[0] += dt; est += dt
            self.trace.append((g, dt, out[nb0:]))
            if g >= 0:
                if M[g][1] == 0: self.unit_est.append([f"{M[g][0]['kind']}{M[g][0]['h']}_{M[g][0]['j']}", 0])
                self.unit_est[-1][1] += dt
        assert ni == len(N) and all(n.done for n in N)
        assert kvp[0] == len(KV) and wp[0] == len(WW)
        self.est = est; self.stall = stall; self.flagged = flagged
        return out

    def evaluate(self, Lm, Lh=300, ovh=3.5, cap=11, show=False, head=None):
        ret = []; t = 0.0; per = []
        def issue(lat):
            nonlocal t
            i = len(ret)
            if i >= cap and ret[i - cap] > t: t = ret[i - cap]
            enter = max(t, ret[i - 7] if i >= 7 else 0)
            ret.append(max(enter + lat, (ret[-1] if ret else 0) + 64))
        for _ in range(8 + self.n_extra_vmem): issue(Lm)
        for g, dt, ins in self.trace:
            t0 = t
            for x in ins:
                if x.k == "dma": issue(Lm if self.ismiss(x.tag) else Lh)
                elif x.k == "vmem": issue(Lm if x.tag != "store" else Lh)
                elif x.k == "wait":
                    m = re.search(r"vmcnt\((\d+)\)", x.t)
                    if m:
                        k = len(ret) - 1 - int(m.group(1))
                        if k >= 0: t = max(t, ret[k])
            t += dt + ovh
            if g >= 0:
                if g % 16 == 0: per.append(0)
                per[-1] += t - t0
        if show: print(" ".join(f"{n}:{int(c)}" for (n, _), c in zip(self.unit_est, per) if c > 640), file=sys.stderr)
        return int(t)

    def flag_ops(self, u):
        return [I(f"buffer_store_dword v{vDX}, v{vDV}, {sr(sWS,4)}, s{sT4+u} offen sc1", "vmem",
                  r=V(vDX) + V(vDV) + S(sWS, 4) + S(sT4 + u), c=8, tag="flag")]

    def want_stamp(self, u):
        k = (u["kind"], u["h"], u["j"])
        if self.stamps == 2: return F_between(self, u, ("QK", 1, 0), ("QK", 2, 0))
        if self.stamps == 5: return F_between(self, u, ("QK", 1, 6), ("QK", 2, 6))
        if self.stamps == 3: return F_between(self, u, ("QP", 0, 0), ("QK", 0, 6))
        if self.stamps == 4: return F_between(self, u, ("QK", 3, 2), ("WO", 3, 7))
        return (u["kind"] == "QK" and u["j"] in (0, 2, 3, 5, 7)) or k in (("QP", 0, 0), ("WO", 3, 0))

    def stamp(self, name):
        k = len(self.stamp_names); self.stamp_names.append(name); assert k < 32, k
        return [I(f"s_memrealtime s[{sSTAMP}:{sSTAMP+1}]", "salu"), I(f"s_memtime s[{sSTAMP+2}:{sSTAMP+3}]", "salu"),
                I("s_waitcnt lgkmcnt(0)", "wait0"),
                I(f"v_writelane_b32 v{vSTAMP}, s{sSTAMP}, {k}", "valu"), I(f"v_writelane_b32 v{vSTAMP}, s{sSTAMP+2}, {k+32}", "valu")]

    def check_lgkm(self, seq):
        q = []
        for x in seq:
            if x.k in ("wait", "wait0"):
                m = re.search(r"lgkmcnt\((\d+)\)", x.t)
                if m:
                    n = int(m.group(1)); q = q[len(q) - n:] if n else []
                continue
            touch = set(x.r | x.w)
            for w in q: assert not (w & touch), ("lgkm hazard", x.t)
            if x.k == "ds": q.append(set(x.w))

    def setup(self):
        o = []
        def s(t): o.append(t)
        s("s_cmp_ge_u32 s2, 256"); s("s_cbranch_scc1 L_end1")
        s("s_bfe_u32 s5, s2, 0x10002")
        s("s_mul_i32 s6, s5, 40"); s("s_add_u32 s6, s0, s6"); s("s_addc_u32 s7, s1, 0")
        s("s_load_dwordx4 s[48:51], s[6:7], 0")
        s("s_load_dwordx4 s[52:55], s[6:7], 16")
        s(f"s_load_dwordx2 s[{sRET}:{sRET+1}], s[6:7], 32")
        s("s_load_dwordx2 s[64:65], s[0:1], 96")
        s("s_load_dwordx2 s[6:7], s[0:1], 80")
        s("s_load_dwordx2 s[0:1], s[0:1], 88")
        if self.stamps:
            s(f"s_memrealtime s[{sSTAMP}:{sSTAMP+1}]"); s(f"s_memtime s[{sSTAMP+2}:{sSTAMP+3}]")
        W, L, t0, t1, t2, t3 = 1, 2, 3, 4, 5, 6
        s(f"v_lshrrev_b32 v{W}, 6, v0"); s(f"v_and_b32 v{L}, 63, v0")
        s(f"v_readfirstlane_b32 s{sWL}, v{W}")
        s("s_lshr_b32 s4, s2, 3")
        s("s_and_b32 s60, s2, 1"); s("s_lshl_b32 s60, s60, 3"); s("s_lshr_b32 s61, s4, 2"); s("s_add_u32 s60, s60, s61")
        s("s_bfe_u32 s62, s2, 0x10001"); s("s_and_b32 s63, s4, 3")
        s("s_lshl_b32 s56, s62, 4"); s("s_add_u32 s56, s56, s63")
        s("s_lshl_b32 s58, s63, 1"); s("s_add_u32 s58, s58, s61")
        s(f"v_lshrrev_b32 v{t1}, 3, v{L}"); s(f"v_and_b32 v{t2}, 7, v{L}"); s(f"v_xor_b32 v{t2}, v{t2}, v{t1}"); s(f"v_lshlrev_b32 v{t2}, 4, v{t2}")
        s(f"v_lshl_add_u32 v{t1}, v{W}, 5, v{t1}"); s(f"v_lshl_add_u32 v{t2}, v{t1}, 10, v{t2}")
        s("s_lshl_b32 s59, s60, 17"); s(f"v_add_u32 v{vDX}, s59, v{t2}")
        s(f"v_lshrrev_b32 v{t0}, 4, v{L}"); s(f"v_bfe_u32 v{t1}, v{L}, 2, 2")
        s(f"v_and_b32 v{t2}, 3, v{L}"); s(f"v_lshlrev_b32 v{t2}, 4, v{t2}")
        s(f"v_lshl_add_u32 v{t3}, v{t0}, 6, v{t2}")
        s(f"v_lshl_add_u32 v{t2}, v{W}, 4, v{t1}"); s(f"v_lshl_add_u32 v{t2}, v{t2}, 13, v{t3}")
        s("s_lshl_b32 s59, s56, 8"); s(f"v_add_u32 v{vDWQ}, s59, v{t2}")
        s(f"s_and_b32 s{sT}, s58, 7"); s(f"s_lshl_b32 s{sT}, s{sT}, 7"); s(f"s_lshl_b32 s{sT2}, s{sT}, 12")
        s(f"s_lshl_b32 s{sWL}, s{sWL}, 12")
        def srdc(d, n, delta): s(f"s_mov_b32 s{d+2}, {n - delta}"); s(f"s_mov_b32 s{d+3}, 0x20000")
        def srda(d, p, delta):
            if delta:
                s(f"s_add_u32 s{d}, s{p}, {delta}"); s(f"s_addc_u32 s{d+1}, s{p+1}, 0"); s(f"s_and_b32 s{d+1}, s{d+1}, 0xffff")
            else:
                s(f"s_mov_b32 s{d}, s{p}"); s(f"s_and_b32 s{d+1}, s{p+1}, 0xffff")
        for q in range(4): srdc(sX + 4 * q, 2 << 20, q * 7168); srdc(sWQ + 4 * q, 4 << 20, q * 31744)
        s("s_waitcnt lgkmcnt(0)")
        for q in range(4): srda(sWQ + 4 * q, 54, q * 31744)
        for q in range(4): srda(sX + 4 * q, 48, q * 7168)
        pre = o; o = []
        if self.stamps:
            s(f"v_mov_b32 v{vSTAMP}, 0"); s(f"v_writelane_b32 v{vSTAMP}, s{sSTAMP}, 0"); s(f"v_writelane_b32 v{vSTAMP}, s{sSTAMP+2}, 32")
        srda(sK, 50, 0); srdc(sK, 64 << 20, 0); srda(sV, 52, 0); srdc(sV, 64 << 20, 0)
        s("s_lshl_b32 s57, s62, 2"); s("s_add_u32 s57, s57, s63")
        for i in range(1, 8):
            s(f"s_add_u32 s{sT+i}, s58, {i}"); s(f"s_and_b32 s{sT+i}, s{sT+i}, 7"); s(f"s_lshl_b32 s{sT+i}, s{sT+i}, 7")
            s(f"s_lshl_b32 s{sT2+i}, s{sT+i}, 12")
        s("s_add_u32 s58, s57, s61")
        for i in range(8):
            s(f"s_add_u32 s{sT4+i}, s58, {i}"); s(f"s_and_b32 s{sT4+i}, s{sT4+i}, 7"); s(f"s_lshl_b32 s{sT4+i}, s{sT4+i}, 7")
        s("s_lshl_b32 s59, s60, 5"); s("s_add_u32 s59, s59, s56"); s("s_lshl_b32 s59, s59, 17")
        s(f"v_lshl_add_u32 v{t2}, v{t1}, 8, v{t3}"); s(f"v_lshl_add_u32 v{t2}, v{W}, 12, v{t2}")
        s(f"v_add_u32 v{vDV}, s59, v{t2}")
        s(f"v_lshrrev_b32 v{t2}, 5, v{L}"); s(f"v_lshl_add_u32 v{t2}, v{t2}, 2, v{t1}"); s(f"v_lshl_add_u32 v{t2}, v{W}, 5, v{t2}")
        s(f"v_and_b32 v{t3}, 0x7f, v{t3}")
        s(f"v_lshl_add_u32 v{t2}, v{t2}, 10, v{t3}")
        s(f"s_lshl_b32 s{sTMP}, s56, 17"); s(f"v_add_u32 v{vDWO}, s{sTMP}, v{t2}")
        s(f"v_and_b32 v7, 1, v{W}")
        s(f"v_bfe_u32 v{t1}, v{L}, 3, 2"); s(f"v_lshrrev_b32 v{t2}, 5, v{L}"); s(f"v_lshl_add_u32 v{t1}, v{t2}, 4, v{t1}")
        s(f"v_lshl_add_u32 v{t1}, v7, 5, v{t1}")
        s(f"v_lshl_add_u32 v{t2}, v7, 2, v{t0}")
        s(f"v_and_b32 v{t3}, 7, v{L}"); s(f"v_xor_b32 v{t2}, v{t2}, v{t3}"); s(f"v_lshlrev_b32 v{t2}, 4, v{t2}")
        s(f"v_lshl_add_u32 v{t2}, v{t1}, 8, v{t2}"); s(f"v_lshrrev_b32 v{t1}, 1, v{W}"); s(f"v_lshl_add_u32 v{t2}, v{t1}, 7, v{t2}")
        s(f"v_add_u32 v{vDK}, s59, v{t2}")
        c_keep = "s61"
        s("s_mov_b32 s61, s4")
        s(f"s_lshl_b32 s{sGRP}, s5, 4"); s(f"s_add_u32 s{sGRP}, s{sGRP}, s60")
        s("s_lshl_b32 s59, s60, 18"); s("s_lshl_b32 s5, s5, 10"); s("s_add_u32 s59, s59, s5"); s(f"s_lshl_b32 s5, s{sWL}, 4"); s("s_add_u32 s59, s59, s5")
        s("s_add_u32 s6, s6, s59"); s("s_addc_u32 s7, s7, 0")
        s(f"s_lshl_b32 s{sPB}, s{sGRP}, 20"); s("s_lshl_b32 s59, s57, 14"); s(f"s_add_u32 s{sPB}, s{sPB}, s59"); s(f"s_add_u32 s{sPB}, s{sPB}, s{sWL}")
        s(f"s_and_b32 s{sWS+1}, s{sWS+1}, 0xffff"); srdc(sWS, WS, 0)
        s(f"s_lshl_b32 s59, s{sGRP}, 10"); s(f"s_add_u32 s59, s59, {FLAG_OFF}")
        s("v_lshlrev_b32 v7, 2, v0"); s("v_add_u32 v7, s59, v7"); s("v_mov_b32 v8, 0x7fffff00")
        s("v_cmp_gt_u32 vcc, 8, v0"); s("s_nop 1"); s("v_cndmask_b32 v7, v8, v7, vcc")
        s("v_cmp_eq_u32 vcc, s57, v0"); s("s_nop 1"); s("v_cndmask_b32 v8, 0, 1, vcc")
        s(f"buffer_store_dword v8, v7, {sr(sWS,4)}, s{sT4+7} offen sc1")
        s("s_lshl_b32 s5, s57, 2"); s("s_add_u32 s5, s5, s59"); s(f"s_cmp_eq_u32 s{sWL}, 0"); s("s_cselect_b32 s5, s5, 0x7fffff00")
        s(f"s_lshl_b32 s{sGRP}, s{sGRP}, 2")
        s(f"v_mov_b32 v{NEGM}, s{sGRP}"); s(f"v_mov_b32 v{NEGM+1}, 1")
        if self.codepf:
            s(f"s_lshr_b32 s{sTMP}, s{sWL}, 12"); s(f"s_lshl_b32 s59, s61, 2"); s(f"s_add_u32 s59, s59, s{sTMP}")
            s(f"s_mul_i32 s59, s59, {self.pf_chunks}"); s("s_lshr_b32 s59, s59, 7"); s("s_lshl_b32 s59, s59, 11")
            s(f"v_lshlrev_b32 v9, 7, v{L}"); s("v_add_u32 v9, s59, v9")
            s("s_getpc_b64 s[62:63]")
            s("s_mov_b64 exec, 0xffff")
            s("global_load_dword v10, v9, s[62:63] offset:2048")
            s("s_mov_b64 exec, -1")
        s("s_mov_b32 s2, s57" if not self.stamps else f"s_lshl_b32 s{sTMP}, s57, 16")
        if self.stamps: s(f"s_or_b32 s2, s2, s{sTMP}")
        for q in range(4): srda(sWO + 4 * q, sRET, q * 7168); srdc(sWO + 4 * q, 4 << 20, q * 7168)
        hf, lam, G, m, u0, u1 = 3, 4, 5, 6, 11, 12
        s(f"v_lshrrev_b32 v{hf}, 5, v{L}"); s(f"v_bfe_u32 v{G}, v{L}, 4, 1")
        s(f"v_and_b32 v{u0}, 7, v{L}"); s(f"v_lshlrev_b32 v{u0}, 7, v{u0}"); s(f"v_lshl_add_u32 v{u0}, v{G}, 10, v{u0}")
        s(f"v_bfe_u32 v{u1}, v{L}, 3, 1"); s(f"v_lshl_add_u32 v{u0}, v{u1}, 12, v{u0}")
        s(f"v_bfe_u32 v{u1}, v{L}, 1, 3"); s(f"v_xor_b32 v{u1}, v{u1}, v{hf}"); s(f"v_lshl_add_u32 v{vLK}, v{u1}, 4, v{u0}")
        for i in range(1, 4): s(f"v_xor_b32 v{vLK+i}, {i << 5}, v{vLK}")
        s(f"v_bfe_u32 v{u1}, v{L}, 2, 2"); s(f"v_lshlrev_b32 v{u1}, 6, v{u1}")
        s(f"v_lshl_add_u32 v{u0}, v{G}, 5, v{u1}"); s(f"v_and_b32 v{m}, 3, v{L}")
        s(f"v_lshl_add_u32 v{vLV}, v{m}, 3, v{u0}"); s(f"v_lshl_add_u32 v{vLV}, v{hf}, 12, v{vLV}"); s(f"v_add_u32 v{vLV}, {LBASE['V'] * 16384}, v{vLV}")
        s(f"v_and_b32 v{m}, 1, v{L}"); s(f"v_lshl_add_u32 v{vLWQ}, v{m}, 4, v{u0}")
        s(f"v_bfe_u32 v{lam}, v{L}, 1, 1"); s(f"v_lshl_add_u32 v{vLWQ}, v{lam}, 3, v{vLWQ}"); s(f"v_lshl_add_u32 v{vLWQ}, v{hf}, 11, v{vLWQ}")
        s(f"v_add_u32 v{vLWQ}, {LBASE['WQ'] * 16384}, v{vLWQ}")
        s(f"v_lshl_add_u32 v{vLWO}, v{m}, 5, v{u1}"); s(f"v_lshl_add_u32 v{vLWO}, v{G}, 4, v{vLWO}")
        s(f"v_lshl_add_u32 v{vLWO}, v{lam}, 3, v{vLWO}"); s(f"v_lshl_add_u32 v{vLWO}, v{hf}, 9, v{vLWO}")
        s(f"v_add_u32 v{vLWO}, {LBASE['WO'] * 16384}, v{vLWO}")
        s(f"v_and_b32 v{u0}, 31, v{L}"); s(f"v_and_b32 v{u1}, 7, v{L}"); s(f"v_xor_b32 v{u1}, v{u1}, v{hf}"); s(f"v_lshlrev_b32 v{u1}, 4, v{u1}")
        s(f"v_lshl_add_u32 v{vLX}, v{u0}, 7, v{u1}"); s(f"v_lshl_add_u32 v{vLX}, v{W}, 12, v{vLX}"); s(f"v_add_u32 v{vLX}, {LBASE['X'] * 16384}, v{vLX}")
        for i in range(1, 4): s(f"v_xor_b32 v{vLX+i}, {i << 5}, v{vLX}")
        s(f"s_mov_b32 s{sC}, {f32(math.log2(math.e) / math.sqrt(128.0))}")
        return pre, o

    def rare(self, Sx, vL):
        t = NEGM + 15
        o = [f"L_rare_{Sx}_{vL}:", "s_nop 15",
             f"v_mov_b32 v{t}, v{vMX}", "s_nop 1", f"v_permlane32_swap_b32 v{t}, v{vMX}", "s_nop 1",
             f"v_max3_f32 v{vMX}, v{vMX}, v{t}, 0",
             f"v_exp_f32 v{t}, -v{vMX}", "s_nop 0"]
        for i in range(32): o.append(f"v_sub_f32 v{Sx+i}, v{Sx+i}, v{vMX}")
        for i in range(15): o.append(f"v_sub_f32 v{NEGM+i}, v{NEGM+i}, v{vMX}")
        for i in range(64): o.append(f"v_mul_f32 v{O+i}, v{t}, v{O+i}")
        o += [f"v_mul_f32 v{vL}, v{t}, v{vL}", f"v_mov_b32 v{t}, v{NEGM}", "s_nop 1", f"s_setpc_b64 s[{sRET}:{sRET+1}]"]
        return o

    def epilogue(self):
        o = []; s = o.append
        vST = vDK; ACC = 192; LD = 0
        mi = "s2"
        if self.stamps:
            s("s_lshr_b32 s16, s2, 16"); mi = "s16"
        s("s_waitcnt vmcnt(0)"); s("s_barrier")
        for u in range(7):
            if u not in self.flagged: s(self.flag_ops(u)[0].t)
        s("v_mbcnt_lo_u32_b32 v224, -1, 0"); s("v_mbcnt_hi_u32_b32 v224, -1, v224")
        s("v_and_b32 v225, 7, v224"); s("v_lshlrev_b32 v225, 2, v225")
        s(f"s_lshl_b32 s17, s{sGRP}, 8"); s(f"s_add_u32 s17, s17, {FLAG_OFF}"); s("v_add_u32 v225, s17, v225")
        s(f"s_lshl_b32 s17, {mi}, 14"); s(f"v_subrev_u32 v{vST}, s17, v{vST}")
        s(f"s_lshl_b32 s18, s{sT4+7}, 10")
        s("s_mov_b32 s19, 0")
        s("L_poll:")
        s(f"buffer_load_dword v226, v225, {sr(sWS,4)}, s{sT4+7} offen sc1")
        s("s_add_u32 s19, s19, 1")
        s("s_waitcnt vmcnt(0)")
        s("v_cmp_ne_u32 vcc, 1, v226")
        s("s_cmp_gt_u32 s19, 200000"); s("s_cbranch_scc1 L_go")
        s("s_cbranch_vccnz L_poll")
        s("L_go:")
        if self.stamps: o += [x.t for x in self.stamp("polled")]
        for k in range(1, 8):
            s(f"s_sub_u32 s17, {mi}, {k}"); s("s_and_b32 s17, s17, 7"); s("s_lshl_b32 s17, s17, 14"); s("s_add_u32 s17, s17, s18")
            for r in range(4):
                d = LD + 16 * (k - 1) + 4 * r
                s(f"buffer_load_dwordx4 v[{d}:{d+3}], v{vST}, {sr(sWS,4)}, s17 offen offset:{1024*r} sc1")
            if k == 2:
                for i in range(32): s(f"v_accvgpr_read_b32 v{ACC+i}, a{224+i}")
                s("v_and_b32 v225, 31, v224"); s("v_lshlrev_b32 v225, 11, v225"); s("v_lshrrev_b32 v226, 5, v224")
                s("v_lshl_add_u32 v225, v226, 5, v225"); s(f"v_add_u32 v225, s{sT4+7}, v225")
                s("s_mov_b32 s20, 0xffff0000")
        for k in range(1, 8):
            for r in range(4):
                s(f"s_waitcnt vmcnt({27 - (4 * (k - 1) + r)})")
                for i in range(4):
                    d = LD + 16 * (k - 1) + 4 * r + i; a = ACC + 8 * r + 2 * i
                    s(f"v_lshlrev_b32 v226, 16, v{d}"); s(f"v_and_b32 v227, s20, v{d}")
                    s(f"v_add_f32 v{a}, v{a}, v226"); s(f"v_add_f32 v{a+1}, v{a+1}, v227")
        for i in range(16): s(f"v_cvt_pk_bf16_f32 v{112+i}, v{ACC+2*i}, v{ACC+2*i+1}")
        for r in range(4):
            s(f"global_store_dwordx4 v225, v[{112+4*r}:{115+4*r}], s[6:7] offset:{(r >> 1) * 64 + (r & 1) * 16}")
        return o

    def generate(self):
        self.n_extra_vmem = 1 + (1 if self.codepf else 0)
        self.pf_chunks = 40
        self.build_units()
        seq = self.schedule()
        if self.opt:
            import dmaopt, hashlib, pickle, os
            dt = {}; extra = {}
            for g, d, ins in self.trace:
                nd = sum(1 for x in ins if x.k == "dma")
                dt[g] = max(32.7, d - 8 * nd if self.info[g]["heavy"] else d) + 3.5
                e = ["h" if x.tag == "store" else "m" for x in ins if x.k == "vmem"]
                if e: extra[g] = e
            key = hashlib.md5(repr((self.plan(), [(t["slot"]) for t in self.tiles], self.Ls, self.hpen, self.merge, self.LA, self.early, sorted(self.rel.items()))).encode()).hexdigest()
            fn = f"plan_{key}.pkl"
            if os.path.exists(fn): plan, fin = pickle.load(open(fn, "rb"))
            else:
                plan, fin = dmaopt.optimize(self.NM, dt, {g: i["heavy"] for g, i in self.info.items()}, {g: not i["sync"] for g, i in self.info.items()},
                                            self.KV, self.WW, self.rel, self.syncs_at, {t["n"]: self.ismiss(t["n"]) for t in self.tiles}, extra,
                                            list(self.Ls), n_extra=self.n_extra_vmem, hpen=self.hpen, verbose=self.verbose,
                                            two={g: (i["nrd"] <= 1 or not i["heavy"]) for g, i in self.info.items()})
                pickle.dump((plan, fin), open(fn, "wb"))
            print("dp final", fin, file=sys.stderr)
            self.plan_ = plan; self.stamp_names = ["start"]
            seq = self.schedule()
        pre, post = self.setup()
        head = seq[:self.after_init_dma]; body = seq[self.after_init_dma:]
        self.check_lgkm(body)
        head, _ = pad_hazards(head)
        body, npad = pad_hazards(body)
        self.npad = npad
        self.code_bytes = sum(nbytes(x) for x in body)
        assert self.code_bytes > (self.pf_chunks + 1) * 2048, self.code_bytes
        L = []
        L.append(f"; @launch grid=(256,1,1) block=(256,1,1) lds=163840")
        L.append('.amdgcn_target "amdgcn-amd-amdhsa--gfx950"'); L.append(".text")
        L.append(f".globl {NAME}_kernel"); L.append(".p2align 8"); L.append(f".type {NAME}_kernel,@function"); L.append(f"{NAME}_kernel:")
        L += ["  " + x for x in pre]
        L.append(text(head)); L += ["  " + x for x in post]; L.append("  s_nop 1")
        L.append(text(body))
        L.append("  s_nop 7")
        if self.stamps: L.append(text(self.stamp("issued")))
        L += [x if x.endswith(":") else "  " + x for x in self.epilogue()]
        if self.stamps:
            L += ["  s_waitcnt vmcnt(0)"]
            L.append(text(self.stamp("end")))
            L += [f"  s_cmp_lg_u32 s{sWL}, 0", "  s_cbranch_scc1 L_end1",
                  "  v_lshlrev_b32 v4, 2, v224", "  s_and_b32 s2, s2, 0xffff", f"  s_lshl_b32 s{sTMP}, s2, 8", f"  s_add_u32 s{sTMP}, s{sTMP}, {WS - 256 * 256}",
                  f"  buffer_store_dword v{vSTAMP}, v4, {sr(sWS,4)}, s{sTMP} offen"]
            L.insert(1, "; stamps: " + " ".join(self.stamp_names))
        L.append("L_end1:"); L.append("  s_endpgm")
        L += ["L_hs_slow:", f"  s_mov_b32 s{sRET}, 0", "L_hs_spin:", f"  v_mov_b32 v{vDWQ}, s{sGRP}",
              f"  global_load_dword v{vDWQ}, v{vDWQ}, s[0:1] sc1", f"  s_add_u32 s{sRET}, s{sRET}, 1", "  s_waitcnt vmcnt(0)",
              f"  v_readfirstlane_b32 s{sTMP}, v{vDWQ}", f"  s_cmp_gt_u32 s{sRET}, 200000", "  s_cbranch_scc1 L_hs_ok",
              f"  s_cmp_lt_u32 s{sTMP}, 8", "  s_cbranch_scc1 L_hs_spin", "  s_branch L_hs_ok"]
        for lab, Sx, vL in self.tramps:
            L += [f"{lab}t:", f"  s_call_b64 s[{sRET}:{sRET+1}], L_rare_{Sx}_{vL}", f"  s_branch {lab}"]
        for Sx, vL in sorted(self.rares): L += self.rare(Sx, vL)
        L.append('.section .rodata,"a"')
        L += [".p2align 6", f".amdhsa_kernel {NAME}_kernel", "  .amdhsa_next_free_vgpr 512", "  .amdhsa_next_free_sgpr 102",
              "  .amdhsa_accum_offset 256", "  .amdhsa_group_segment_fixed_size 0", "  .amdhsa_kernarg_size 104",
              "  .amdhsa_user_sgpr_count 2", "  .amdhsa_user_sgpr_kernarg_segment_ptr 1",
              "  .amdhsa_system_sgpr_workgroup_id_x 1", ".end_amdhsa_kernel"]
        return "\n".join(L) + "\n"

def F_between(self, u, a, b):
    return self.find[a] <= u["start"] <= self.find[b] and len(self.stamp_names) < 28

if __name__ == "__main__":
    import argparse
    ap = argparse.ArgumentParser()
    ap.add_argument("-o", default="k3.s")
    ap.add_argument("--opt", default="")
    ap.add_argument("--units", action="store_true")
    a = ap.parse_args()
    kw = eval(f"dict({a.opt})")
    g = Gen(**kw)
    t = g.generate()
    open(a.o, "w").write(t)
    if a.units: print(" ".join(f"{n}:{int(c)}" for n, c in g.unit_est), file=sys.stderr)
    print("eval L=1000,1400,1800,2200:", [g.evaluate(L, show=(a.units and L == 1800)) for L in (1000, 1400, 1800, 2200)], file=sys.stderr)
    print(a.o, "lines", t.count("\n"), "code hint", g.code_bytes, "est cycles", int(g.est), "model stall", int(g.stall), "pad states", g.npad, "flagged", sorted(g.flagged), file=sys.stderr)
```

```python
class I:
    __slots__ = ("t", "k", "r", "w", "c", "tag", "srcc")
    def __init__(self, t, k, r=(), w=(), c=1, tag=None, srcc=()):
        self.t = t; self.k = k; self.r = frozenset(r); self.w = frozenset(w); self.c = c; self.tag = tag
        self.srcc = frozenset(srcc)
def V(a, n=1): return [("v", a + i) for i in range(n)]
def A(a, n=1): return [("a", a + i) for i in range(n)]
def S(a, n=1): return [("s", a + i) for i in range(n)]
def vr(a, n): return f"v[{a}:{a+n-1}]" if n > 1 else f"v{a}"
def ar(a, n): return f"a[{a}:{a+n-1}]" if n > 1 else f"a{a}"
def sr(a, n): return f"s[{a}:{a+n-1}]" if n > 1 else f"s{a}"

VALU_K = ("valu", "trans", "perm")
def states(ins):
    if ins.k == "nop": return ins.tag + 1
    if ins.k in ("label", "comment"): return 0
    return 1

def need_states(p, c):
    n = 0
    pv = p.k in VALU_K
    cv = c.k in VALU_K
    if pv and c.k == "mfma" and (p.w & c.r): n = max(n, 2)
    if p.k == "mfma":
        raw, ovl, war = (8, 6, 3) if len(p.w) == 4 else (12, 10, 7)
        if cv and (p.w & (c.r | c.w)): n = max(n, raw)
        if c.k in ("ds", "vmem", "dma") and (p.w & (c.r | c.w)): n = max(n, raw)
        if c.k == "mfma":
            ab = c.r - c.srcc
            if p.w & ab: n = max(n, raw)
            if (p.w & c.srcc) and p.w != c.srcc: n = max(n, ovl)
        if cv and (p.srcc & c.w): n = max(n, war)
    if p.k == "trans" and c.k in ("valu", "perm") and (p.w & c.r): n = max(n, 1)
    if pv and c.k == "perm" and (p.w & c.r): n = max(n, 2)
    if pv:
        sw = {x for x in p.w if x == "vcc" or (isinstance(x, tuple) and x[0] == "s")}
        if sw:
            if cv and (sw & c.r): n = max(n, 2)
            if c.k in ("vmem", "dma") and (sw & c.r): n = max(n, 5)
            if c.k in ("salu", "branch") and (sw & c.r): n = max(n, 1)
        if c.k == "valu" and c.tag == "rfl" and (p.w & c.r): n = max(n, 1)
    if p.k == "salu" and "m0" in p.w and c.k == "dma": n = max(n, 1)
    if p.k == "vmem" and p.tag == "store" and (p.srcc & c.w): n = max(n, 2)
    return n

def pad_hazards(seq, window=24):
    out = []
    npad = 0
    for c in seq:
        if c.k in ("label", "comment"):
            out.append(c); continue
        dist = 0; need = 0
        for p in reversed(out):
            if dist >= 12: break
            ns = need_states(p, c)
            if ns > dist: need = max(need, ns - dist)
            dist += states(p)
        if need > 0:
            out.append(I(f"s_nop {need-1}", "nop", tag=need - 1)); npad += need
        out.append(c)
    return out, npad

def text(seq):
    o = []
    for i in seq:
        if i.k == "label": o.append(i.t)
        elif i.k == "comment": o.append("; " + i.t)
        else: o.append("  " + i.t)
    return "\n".join(o)
```

```python
import sys
def optimize(NM, dt, heavy, nosync, KV, WW, rel, syncs_at, miss, extra_at, Ls, Lh=300, cap=11, limit=10, keep=2, init=8, n_extra=2,
             hpen=6.0, verbose=False, two=None, cpen=0.0, init2=''):
    S = len(Ls)
    lastq = {}
    for name, st in (("K", KV), ("W", WW)):
        for i, (t, q) in enumerate(st): lastq[t] = (name, i)
    def issue(t, ret, ismiss):
        t2 = list(t); r2 = []
        for s in range(S):
            r = ret[s]; n = len(r)
            if n >= cap and r[n - cap] > t2[s]: t2[s] = r[n - cap]
            enter = max(t2[s], r[n - 7] if n >= 7 else 0)
            x = max(enter + (Ls[s] if ismiss else Lh), (r[-1] if n else 0) + 64)
            r2.append((r + (x,))[-cap:])
        return tuple(t2), tuple(r2)
    t = tuple([0.0] * S); ret = tuple([()] * S); done = {}
    for i in range(init):
        tl, q = WW[i]; t, ret = issue(t, ret, miss[tl])
        if q == 3: done[tl] = tuple(r[-1] for r in ret)
    for i in range(n_extra): t, ret = issue(t, ret, True)
    k0, w0 = 0, init
    for ch in init2:
        tl, q = KV[k0] if ch == "K" else WW[w0]
        t, ret = issue(t, ret, True)
        if q == 3: done[tl] = tuple(r[-1] for r in ret)
        if ch == "K": k0 += 1
        else: w0 += 1
    states = {(k0, w0, 0): [(0.0, t, ret, done, None)]}
    for g in range(-1, NM):
        new = {}
        need = syncs_at.get(g)
        for (kp, wp, prevd), lst in states.items():
            if need is not None:
                ok = True
                for tl in need:
                    nm, i = lastq[tl]
                    if (kp if nm == "K" else wp) <= i: ok = False; break
                if not ok: continue
            for (c, t, ret, done, path) in lst:
                if need is not None:
                    t = tuple(max([t[s]] + [done[tl][s] for tl in need]) for s in range(S))
                    done = {k: v for k, v in done.items() if k not in need}
                opts = [""]
                if nosync[g]:
                    k_ok = kp < len(KV) and rel[KV[kp][0]] <= g
                    w_ok = wp < len(WW) and rel[WW[wp][0]] <= g
                    if k_ok: opts.append("K")
                    if w_ok: opts.append("W")
                    if two is not None and two[g]:
                        if k_ok and kp + 1 < len(KV) and rel[KV[kp + 1][0]] <= g: opts.append("KK")
                        if w_ok and wp + 1 < len(WW) and rel[WW[wp + 1][0]] <= g: opts.append("WW")
                for o in opts:
                    t2, r2, d2, k2, w2 = t, ret, done, kp, wp
                    for ch in o:
                        tl, q = KV[k2] if ch == "K" else WW[w2]
                        t2, r2 = issue(t2, r2, miss[tl])
                        if q == 3:
                            d2 = dict(d2); d2[tl] = tuple(r[-1] for r in r2)
                        if ch == "K": k2 += 1
                        else: w2 += 1
                    for e in extra_at.get(g, ()): t2, r2 = issue(t2, r2, e == "m")
                    add = dt[g] + (hpen * len(o) if heavy[g] else 0) + (cpen * (len(o) - 1 + prevd) if o else 0)
                    t2 = tuple(x + add for x in t2)
                    cost = sum(t2) + 0.25 * sum(max(0, r2[s][-1] - t2[s]) for s in range(S))
                    L = new.setdefault((k2, w2, 1 if (o or g in extra_at) else 0), [])
                    L.append((cost, t2, r2, d2, (path, g, o) if o else path))
        best = min(l[0] for L in new.values() for l in L) if new else None
        assert best is not None, ("infeasible at gap", g)
        states = {}
        for k, L in new.items():
            L.sort(key=lambda x: x[0])
            L = [x for x in L[:keep] if x[0] < best + 2500 * S]
            if L: states[k] = L
        if len(states) > 600:
            items = sorted(states.items(), key=lambda kv: kv[1][0][0] - 60 * S * (kv[0][0] * 2.0 + kv[0][1]))
            states = dict(items[:600])
        if verbose and g % 256 == 0: print(g, len(states), int(best / S), file=sys.stderr)
    fin = min((L[0] for k, L in states.items() if k[:2] == (len(KV), len(WW))), key=lambda x: x[0])
    plan = {}; p = fin[4]
    while p is not None:
        p, g, o = p[0], p[1], p[2]; plan[g] = o
    return plan, [int(x) for x in fin[1]]
```

```python
import sys, struct, math, re
from asmlib import *
NAME = "concat_heads__mha_block_cached__mha_block_cached__near_ridge"
WS = 289406976
B0, O, SS, B1, B2, NEGM, FR, XF = 0, 32, 96, 128, 160, 192, 200, 220
vDK, vDV, vDX, vDWQ, vDWO = 236, 237, 238, 239, 240
vLK, vLX, vLV, vLWQ, vLWO = 241, 243, 245, 247, 249
vL, vMX, vT, vSTAMP = 251, 253, 254, 255
vRL, vGA, vPA, vPL, vOA, vLN, SEL = XF, XF + 2, XF + 3, XF + 4, XF + 5, XF + 6, XF + 8
sK, sV, sX, sWQ, sWO, sWS = 8, 12, 16, 32, 48, 64
sWL, sTMP, sC = 68, 69, 70
sT, sT2, sT3 = 72, 80, 88
sRET, sSTAMP = 96, 98
sGRP, sPB = 3, 4
LBASE = {"K": 0, "X": 2, "V": 4, "WQ": 6, "WO": 6}
FLAG_OFF = 40 << 20
MF = "v_mfma_f32_16x16x32_bf16"

def f32(x): return "0x%08x" % struct.unpack("<I", struct.pack("<f", x))[0]
def nbytes(x):
    t = x.t
    if "\n" in t: return sum(nbytes(I(l.strip(), x.k)) for l in t.split("\n") if not l.endswith(":"))
    if x.k in ("mfma", "ds", "dma", "vmem"): return 8
    if x.k in ("label", "comment"): return 0
    if t.startswith(("v_cvt_pk", "v_max3", "v_accvgpr", "v_fma", "v_lshl_add", "v_writelane", "v_mbcnt", "v_bfe", "v_cndmask")): return 8
    m = re.search(r", (\d+)(,|$)", t)
    if m and int(m.group(1)) > 64: return 8
    if "0x" in t: return 8
    return 4

P0a = "K0 Q k1 V0 K2 Q V1 k3 Q V2 K4 Q V3 k5 Q V4 K6 Q V5 k7 Q V6 Q V7"
P0b = "K0 Q k1 Q V0 K2 Q V1 k3 Q V2 K4 Q V3 k5 Q V4 K6 Q V5 k7 Q V6 V7"
P3a = "K0 W k1 V0 K2 W V1 k3 W V2 K4 W V3 k5 W V4 K6 W V5 k7 W V6 W V7"
P3e = "K0 W k1 V0 K2 W V1 k3 W V2 K4 W V3 k5 W V4 K6 W V5 k7 V6 W V7"
PM44 = "K0 W W V0 K1 W W V1 K2 W W V2 K3 W W V3 K4 Q Q V4 K5 Q Q V5 K6 Q Q V6 K7 Q Q V7"
PM44d = "K0 W W k1 V0 W W K2 V1 W W k3 V2 W W V3 K4 Q Q V4 K5 Q Q V5 K6 Q Q V6 K7 Q Q V7"
PM53b = "K0 W W k1 V0 W K2 W V1 k3 W V2 W K4 W V3 W Q V4 K5 Q Q V5 Q K6 Q Q V6 K7 Q Q V7"
ORDERS = {"B": [P0a, PM44, PM44, P3a], "H": [P0a, PM44, PM44, P3e], "I": [P0a, PM44d, PM44d, P3e], "J": [P0a, PM53b, PM53b, P3e]}

class Node:
    __slots__ = ("x", "lo", "hi", "deps", "cls", "done", "succ", "pos", "newgap")
    def __init__(self, x, lo, hi, deps=(), cls="valu", newgap=False):
        self.x = x; self.lo = lo; self.hi = hi; self.deps = [d for d in deps if d is not None]; self.cls = cls
        self.done = False; self.succ = []; self.pos = None; self.newgap = newgap

class Gen:
    def __init__(self, LA=4, NB=5, kvflag=" nt", wflag="", stamps=0, thr=10.0, codepf=True, verbose=False, order="I",
                 merge=False, Ls=(1200, 1600), hpen=0.0, cpen=30.0, flagd=40, eattempt=(1, 2, 3, 4), lastpoll=20, tailsync=1, stagew=14,
                 budget=8, slack=4, kx=2, padto=0, split=False, init2='WWWWWWWWWW', tlb=True, at_unit=('WO', 0, 3), kvgap=14, ntset=(('WQ',0,0),('X',0,0),('WQ',0,1),('X',0,1),('WQ',0,2)), defer=True, xgap=4):
        self.__dict__.update(locals()); del self.__dict__["self"]
        self.units = []; self.tiles = []; self.stamp_names = ["start"]; self.plan_ = None

    def plan(self):
        o = [("QP", 0, i) for i in range(8)]
        v = lambda b: [("v", b), ("v", b + 16)]
        self.Qb = {0: B0, 1: B2, 2: B0, 3: B2}
        self.QA = {0: v(B1) + v(B2), 1: v(B2) + [("a", 0), ("a", 16)], 2: v(B0) + v(B1), 3: v(B2) + v(B1)}
        Sb = {}
        for h, P in enumerate(ORDERS[self.order]):
            wi = qi = 0
            for tok in P.split():
                if tok[0] in "Kk": o.append(("QK", h, int(tok[1]))); Sb[(h, int(tok[1]))] = B1 if tok[0] == "k" else SS
                elif tok[0] == "V": o.append(("PV", h, int(tok[1])))
                elif tok == "W": o.append(("WO", h - 1, wi)); wi += 1
                elif tok == "Q": o.append(("QP", h + 1, qi)); qi += 1
        o += [("WO", 3, u) for u in range(7)]
        if ("WO", 2, 7) not in o: o.append(("WO", 2, 7))
        o.append(("WO", 3, 7))
        assert len(o) == 128 and len(set(o)) == 128
        self.Sb = Sb
        return o

    def ring(self, kind, h, j):
        if kind == "K": return [0, 1, 2, 3] if (h == 3 or (h >= 1 and j <= self.kx)) else [0, 1]
        if kind == "V": return [4, 5] if (h == 3 and j >= 5) else [4, 5, 6]
        if kind == "X": return [2, 3, 5] if h == 0 else [2, 3]
        if kind == "WQ": return [6, 7, 8, 9] if h == 0 else [7, 8, 9]
        return ([4, 5] if (h, j) == (3, 7) else [0, 1, 2, 3, 6, 7, 8, 9]) if self.in_tail else [7, 8, 9]

    def tile(self, kind, head, idx, lastuse):
        n = len(self.tiles)
        slot = min(self.ring(kind, head, idx), key=lambda s: self.slotlast.get(s, (-1, None))[0])
        prev = self.slotlast.get(slot, (-1, None))[1]
        self.slotlast[slot] = (lastuse, n)
        lb = (0 if slot < 4 else 4) if (kind == "WO" and slot < 6) else LBASE[kind]
        self.tiles.append(dict(kind=kind, head=head, idx=idx, n=n, slot=slot, prev=prev, off=(slot - lb) * 16384))
        assert 0 <= slot - lb < 4
        return n

    def build_units(self):
        U = self.units; self.slotlast = {}; self.in_tail = False
        for k, (kind, h, j) in enumerate(self.plan()):
            g0 = 16 * k; mf = []
            if (kind, h, j) == ("WO", 3, 0): self.in_tail = True
            if kind == "QK":
                t = self.tile("K", h, j, g0 + 15); Sx = self.Sb[(h, j)]; off = self.tiles[t]["off"]; tl = [t]
                for blk in range(4):
                    for s in range(4):
                        c = None if s else ("0" if j == 0 else "negm")
                        mf.append(dict(D=("v", Sx + 16 * (blk >> 1) + 4 * (blk & 1)), B=self.Qb[h] + 8 * s, C=c,
                                       rd=("B", t, vLK + (s & 1), off + (s >> 1) * 8192 + blk * 1024)))
            elif kind == "PV":
                t = self.tile("V", h, j, g0 + 15); Sx = self.Sb[(h, j)]; off = self.tiles[t]["off"]; tl = [t]
                for ks in range(2):
                    for db in range(8):
                        c = "0" if (j == 0 and ks == 0) else None
                        mf.append(dict(D=("v", O + 16 * (db >> 1) + 4 * (db & 1)), B=Sx + 8 * ks, C=c,
                                       rd=("T", t, vLV + (db & 1), [off + (2 * ks + z) * 1024 + (db >> 1) * 256 for z in range(2)])))
            elif kind == "QP":
                tw = self.tile("WQ", h, j, g0 + 15); tx = self.tile("X", h, j, g0 + 8); off = self.tiles[tw]["off"]; tl = [tw, tx]
                for s in range(2):
                    for db in range(8):
                        c = "0" if (j == 0 and s == 0) else None
                        kd, base = self.QA[h][db >> 1]
                        m = dict(D=(kd, base + 4 * (db & 1)), B=XF + 8 * s, C=c,
                                 rd=("T", tw, vLWQ + (db & 1), [off + (2 * s + z) * 1024 + (db >> 1) * 256 for z in range(2)]))
                        if db == 0: m["xr"] = (tx, vLX + s, self.tiles[tx]["off"])
                        mf.append(m)
            else:
                t = self.tile("WO", h, j, g0 + 15); off = self.tiles[t]["off"]; tl = [t]; sl = self.tiles[t]["slot"]
                ra = vLWQ if sl < 4 else vLV if sl < 6 else vLWO
                if h == 3 and j > 0: seq = [(s, nb) for p in range(2) for s in range(4) for nb in (2 * p, 2 * p + 1)]
                else: seq = [(s, nb) for s in range(4) for nb in range(4)]
                for s, nb in seq:
                    c = "0" if (h == 0 and s == 0) else None
                    mf.append(dict(D=("a", 32 * j + 16 * (nb >> 1) + 4 * (nb & 1)), B=self.Qb[h] + 8 * s, C=c,
                                   rd=("T", t, ra + (nb & 1), [off + (8 * s + 4 * z) * 512 + (nb >> 1) * 256 for z in range(2)])))
            U.append(dict(kind=kind, h=h, j=j, tiles=tl, mf=mf, start=g0))
        self.NM = 16 * len(U)
        self.find = {(u["kind"], u["h"], u["j"]): u["start"] for u in U}

    def mfma(self, m, g, qh):
        fb = FR + 4 * (g % self.NB)
        k, d = m["D"]; d += 8 * qh; b = m["B"] + 4 * qh
        dt = vr(d, 4) if k == "v" else ar(d, 4)
        dw = V(d, 4) if k == "v" else A(d, 4)
        if m["C"] == "0": ct, cr = "0", []
        elif m["C"] == "negm": ct, cr = vr(NEGM + 4 * qh, 4), V(NEGM + 4 * qh, 4)
        else: ct, cr = dt, dw
        return I(f"{MF} {dt}, {vr(fb,4)}, {vr(b,4)}, {ct}", "mfma", r=V(fb, 4) + V(b, 4) + cr, w=dw, srcc=cr)

    def reads(self, m, g):
        fb = FR + 4 * (g % self.NB); o = []; ox = []
        if "xr" in m:
            tx, a, off = m["xr"]
            for qh in range(2):
                ox.append(I(f"ds_read_b128 {vr(m['B'] + 4 * qh, 4)}, v{a} offset:{off + 2048 * qh}", "ds", r=V(a), w=V(m["B"] + 4 * qh, 4), tag=tx, c=4))
        k, t, a, off = m["rd"]
        if k == "B":
            o.append(I(f"ds_read_b128 {vr(fb,4)}, v{a} offset:{off}", "ds", r=V(a), w=V(fb, 4), tag=t, c=4))
        else:
            for z in range(2):
                assert off[z] < 65536
                o.append(I(f"ds_read_b64_tr_b16 {vr(fb + 2 * z, 2)}, v{a} offset:{off[z]}", "ds", r=V(a), w=V(fb + 2 * z, 2), tag=t, c=4))
        return o, ox

    def dma_ops(self, n):
        t = self.tiles[n]; k = t["kind"]
        vd = {"K": vDK, "V": vDV, "X": vDX, "WQ": vDWQ, "WO": vDWO}[k]
        post = []
        seq = [x for x in self.tiles if x["kind"] == k]; i_ = seq.index(t)
        if k != "X" and i_ + 1 < len(seq) and seq[i_ + 1]["head"] != t["head"]:
            dlt = (seq[i_ + 1]["head"] - t["head"]) * 4 * (256 if k == "WQ" else 131072)
            post.append(I(f"{'v_add_u32' if dlt > 0 else 'v_subrev_u32'} v{vd}, {abs(dlt)}, v{vd}", "valu", r=V(vd), w=V(vd), c=4))
        m0 = I(f"s_add_u32 m0, s{sWL}, {t['slot'] * 16384}", "salu", r=S(sWL), w=["m0", "scc"], c=4)
        so = {"K": sT3, "V": sT3, "X": sT, "WQ": sT2, "WO": sT}[k] + t["idx"]
        d = []
        for q in range(4):
            srd = {"K": sK, "V": sV, "X": sX + 4 * q, "WQ": sWQ + 4 * q, "WO": sWO + 4 * q}[k]
            fl = self.kvflag if (k in "KV" or (k, t["head"], t["idx"]) in self.ntset) else self.wflag
            off = f" offset:{1024 * q}" if q else ""
            d.append(I(f"buffer_load_dwordx4 v{vd}, {sr(srd,4)}, s{so} offen{off}{fl} lds", "dma", r=V(vd) + S(srd, 4) + ["m0"], c=8, tag=n))
        return m0, d, post

    def flag_op(self, u):
        return I(f"buffer_store_dword v{vDX}, v{vDV}, {sr(sWS,4)}, s{sT+u} offen sc1", "vmem", r=V(vDX) + V(vDV), c=8, tag="flag")

    def build_nodes(self):
        N = []; F = self.find; self.tramps = []; self.rares = set()
        def vop(t, r, w, k="valu", c=4): return I(t, k, r=r, w=w, c=c)
        def cvt(d, a, b=None):
            b = a + 1 if b is None else b
            return vop(f"v_cvt_pk_bf16_f32 v{d}, v{a}, v{b}", V(a) + V(b), V(d))
        def add(x, lo, hi, deps=(), cls="valu", newgap=False):
            if lo > hi + 0.5: lo = hi
            n = Node(x, lo, hi, deps, cls, newgap); N.append(n); return n
        def swap(op, a, b): return vop(f"v_permlane{op}_swap_b32 v{a}, v{b}", V(a) + V(b), V(a) + V(b), k="perm")
        def xreduce(op, r, t, lo, hi, prev):
            for w in ("32", "16"):
                prev = add(vop(f"v_mov_b32 v{t}, v{r}", V(r), V(t)), lo, hi, [prev])
                prev = add(swap(w, t, r), lo, hi, [prev], newgap=True)
                prev = add(vop(f"{op} v{r}, v{r}, v{t}", V(r) + V(t), V(r)), lo, hi, [prev])
            return prev
        def maxchain(dst, regs, los, prev):
            regs = list(regs); first = True
            while regs:
                n = 3 if first else 2
                take, regs = regs[:n], regs[n:]
                lo = max(los(r) for r in take)
                if first: x = vop(f"v_max3_f32 v{dst}, v{take[0]}, v{take[1]}, v{take[2]}", [("v", r) for r in take], V(dst))
                elif len(take) == 2: x = vop(f"v_max3_f32 v{dst}, v{dst}, v{take[0]}, v{take[1]}", V(dst) + [("v", r) for r in take], V(dst))
                else: x = vop(f"v_max_f32 v{dst}, v{dst}, v{take[0]}", V(dst) + V(take[0]), V(dst))
                prev = add(x, lo, BIG, [prev]); first = False
            return prev
        D = 2; BIG = self.NM - 1
        mxfree = None; rlfree = None
        for h in range(4):
            qb = self.Qb[h]; qs = F[("QK", h, 0)]; q7 = F[("QP", h, 7)]; prev = None; sb = self.Sb[(h, 0)]
            for i in range(32):
                kind, base = self.QA[h][i // 8]; s0 = base + 2 * (i % 8)
                lo = q7 + 8 + 2 * (i // 8) + 1 + D
                dl = qs + i // 8
                hi = max(dl - 2, min(lo, dl - 1))
                if kind == "a":
                    lo = max(lo, q7 + 16); hi = max(dl - 2, min(lo, dl - 1)); t2 = XF + 7
                    a = add(vop(f"v_accvgpr_read_b32 v{qb+i}, a{s0}", A(s0), V(qb + i)), lo, hi, [prev])
                    a = add(vop(f"v_accvgpr_read_b32 v{t2}, a{s0+1}", A(s0 + 1), V(t2)), lo, hi, [a])
                    a = add(vop(f"v_mul_f32 v{qb+i}, s{sC}, v{qb+i}", V(qb + i), V(qb + i)), lo, hi, [a])
                    a = add(vop(f"v_mul_f32 v{t2}, s{sC}, v{t2}", V(t2), V(t2)), lo, hi, [a])
                    prev = add(cvt(qb + i, qb + i, t2), lo, hi, [a])
                else:
                    a = add(vop(f"v_mul_f32 v{s0}, s{sC}, v{s0}", V(s0), V(s0)), lo, hi, [prev])
                    a = add(vop(f"v_mul_f32 v{s0+1}, s{sC}, v{s0+1}", V(s0 + 1), V(s0 + 1)), lo, hi, [a])
                    prev = add(cvt(qb + i, s0), lo, hi, [a])
                if i % 4 == 3:
                    sw = add(swap("16", qb + i - 3, qb + i - 1), lo, hi, [prev])
                    add(swap("16", qb + i - 2, qb + i), lo, hi, [sw])
            lastadd = rlfree
            for j in range(8):
                Sx = self.Sb[(h, j)]; qk = F[("QK", h, j)]; pv = F[("PV", h, j)]
                def los(r, Sx=Sx, qk=qk):
                    o_ = r - Sx; blk = 2 * (o_ >> 4) + ((o_ >> 2) & 1)
                    return qk + 4 * blk + 3 + D
                l1 = qk + 15 + D
                nxt = F[("QK", h, j + 1)] if j < 7 else BIG
                byblk = sorted(range(Sx, Sx + 32), key=lambda r: (los(r), r))
                if j == 0:
                    ln = 0 if h == 0 else F[("QK", h - 1, 7)] + 12 + D
                    gates = []
                    for qh in range(2):
                        m_ = NEGM + 4 * qh
                        regs = [r for r in byblk if ((r - Sx) >> 3) & 1 == qh]
                        p = maxchain(m_ + 1, regs, lambda r: max(los(r), ln), mxfree)
                        p = xreduce("v_max_f32", m_ + 1, m_ + 2, l1, BIG, p)
                        p = add(vop(f"v_sub_f32 v{m_}, 0, v{m_+1}", V(m_ + 1), V(m_)), l1, nxt - 2, [p]); gates.append(p)
                        for i in range(1, 4): add(vop(f"v_mov_b32 v{m_+i}, v{m_}", V(m_), V(m_ + i)), l1, nxt - 2, [p])
                    pe = None
                else:
                    lab = f"L_r{h}_{j}"
                    p = maxchain(vMX, byblk, los, mxfree)
                    p = add(vop(f"v_cmp_lt_f32 vcc, {f32(self.thr)}, v{vMX}", V(vMX), ["vcc"]), l1, BIG, [p])
                    pe = add(I(f"s_cbranch_vccnz {lab}t", "branch", r=["vcc"], c=4, tag=lab), max(l1, F[("PV", h, j - 1)] + 15.5), nxt - 1, [p, lastadd], cls="scalar")
                    self.tramps.append((lab, Sx)); self.rares.add(Sx)
                    mxfree = pe
                pa = lastadd
                for p in range(16):
                    a = Sx + 2 * p; hi = pv + 8 * (p // 8) - 2; qh = (p >> 2) & 1; l_ = vL + qh
                    es = []
                    for r in (a, a + 1):
                        if j == 0: pe = add(vop(f"v_add_f32 v{r}, v{r}, v{NEGM+4*qh}", V(r) + V(NEGM + 4 * qh), V(r)), l1, hi, [pe, gates[qh]])
                        pe = add(vop(f"v_exp_f32 v{r}, v{r}", V(r), V(r), k="trans", c=8), l1, hi, [pe]); es.append(pe)
                    if j == 0 and p in (0, 4):
                        pa = add(vop(f"v_add_f32 v{l_}, v{a}, v{a+1}", V(a, 2), V(l_)), l1, hi, [pa] + es)
                    else:
                        pa = add(vop(f"v_add_f32 v{l_}, v{l_}, v{a}", V(a) + V(l_), V(l_)), l1, hi, [pa, es[0]])
                        pa = add(vop(f"v_add_f32 v{l_}, v{l_}, v{a+1}", V(a + 1) + V(l_), V(l_)), l1, hi, [pa, es[1]])
                    pa = add(cvt(Sx + p, a), l1, hi, [pa])
                lastadd = pa
            pv7 = F[("PV", h, 7)]; ws = F[("WO", h, 0)]; tmp = self.Sb[(h, 7)] + 30
            lr = pv7 if h == 3 else max(pv7, F[("QP", h + 1, 7)] + 16)
            rs = []
            for qh in range(2):
                p = xreduce("v_add_f32", vL + qh, tmp + qh, pv7, pv7 + 14, lastadd)
                rs.append(add(vop(f"v_rcp_f32 v{vRL+qh}, v{vL+qh}", V(vL + qh), V(vRL + qh), k="trans", c=8), lr, BIG, [p] + rs))
            prev = rlfree = rs[1]
            for i in range(32):
                s0 = O + 2 * i; lo = pv7 + 8 + 2 * (i // 8) + 1 + D; dl = ws + 4 * (i // 8); rl = vRL + ((i >> 2) & 1)
                hi = max(dl - 2, min(lo, dl - 1))
                a = add(vop(f"v_mul_f32 v{s0}, v{rl}, v{s0}", V(s0) + V(rl), V(s0)), lo, hi, [prev])
                a = add(vop(f"v_mul_f32 v{s0+1}, v{rl}, v{s0+1}", V(s0 + 1) + V(rl), V(s0 + 1)), lo, hi, [a])
                prev = add(cvt(qb + i, s0), lo, hi, [a])
        def chain(l, w, items, prev=None):
            for it in items:
                k = "salu" if it.startswith("s_") else "valu"
                regs = [("v", int(x)) for x in re.findall(r"\bv(\d+)", it)]
                sw = S(24, 2) if "s[24:25]" in it else []
                x = I(it, k, r=regs + sw, w=(regs[:1] if not it.startswith("v_cmp") else sw) + (["scc"] if k == "salu" else []), c=4 * (it.count("\n  s_") + 1))
                prev = add(x, l, l + w, [prev])
            return prev
        p = None; dl = self.kvgap - 1 if self.defer else self.xgap + 2; l0_ = 0 if self.defer else self.xgap
        for it in self.setup()[2]:
            if it == "@kv": dl = 100; continue
            regs = [("v", int(x)) for x in re.findall(r"\bv(\d+)", it)]
            if it.startswith(("buffer_", "global_")):
                ld = it.startswith("global_load")
                p = add(I(it, "vmem", r=regs[1:] if ld else regs, w=regs[:1] if ld else [], c=8, tag="hs"), l0_, dl, [p], cls="mem")
            elif it.startswith("s_"): p = add(I(it, "salu", w=["scc"], c=4 * (it.count("\n") + 1)), 0, dl, [p])
            elif it.startswith("v_cmp"): p = add(I(it, "valu", r=regs, w=["vcc"], c=4), 0, dl, [p])
            else: p = add(I(it, "valu", r=regs + (["vcc"] if "vcc" in it else []), w=regs[:1], c=4), 0, dl, [p])
        la = F[self.at_unit] + 2
        add(I(f"s_cmp_lg_u32 s{sWL}, 0\n  s_cbranch_scc1 L_noat\n  s_mov_b64 exec, 1\n  v_mov_b32 v{vT}, 4\n  global_atomic_add v{vT}, v{vT}, s[0:1] offset:-4 sc1\n  s_mov_b64 exec, -1\nL_noat:",
              "xmem", w=V(vT) + ["scc"], c=24), la, la + 4, cls="mem")
        l = F[("QK", 3, 2)]
        chain(l, 30, [f"v_subrev_u32 v{vLWQ+i}, {6 * 16384}, v{vLWO+i}" for i in range(2)])
        chain(F[("WO", 3, 1)], 60, [f"v_subrev_u32 v{vLV+i}, {2 * 16384}, v{vLWO+i}" for i in range(2)])
        p = chain(l, 40, [f"v_mov_b32 v{vDWQ}, 0"])
        self.hs_load = add(I(f"global_load_dword v{vDWQ}, v{vDWQ}, s[0:1] sc1", "vmem", r=V(vDWQ), w=V(vDWQ), c=8, tag="hs"), l, l + 44, [p], cls="mem")
        t0, t1 = vGA, vPA
        p = chain(l, 60, [f"v_mbcnt_lo_u32_b32 v{vLN}, -1, 0", f"v_mbcnt_hi_u32_b32 v{vLN}, -1, v{vLN}",
                          f"v_lshrrev_b32 v{t0}, 2, v{vLN}", f"v_xor_b32 v{t0}, v{t0}, v{vLN}", f"v_and_b32 v{t0}, 12, v{t0}",
                          f"v_bfe_u32 v{t1}, v{vLN}, 1, 1", f"v_or_b32 v{t0}, v{t0}, v{t1}",
                          f"v_and_b32 v{t1}, 1, v{vLN}", f"v_lshlrev_b32 v{t1}, 4, v{t1}", f"v_mov_b32 v{SEL+2}, 0x3f80", f"v_lshlrev_b32 v{t1}, v{t1}, v{SEL+2}",
                          f"v_cmp_eq_u32 s[24:25], 0, v{t0}", f"v_cndmask_b32 v{SEL}, 0, v{t1}, s[24:25]",
                          f"v_cmp_eq_u32 s[24:25], 1, v{t0}", f"v_cndmask_b32 v{SEL+1}, 0, v{t1}, s[24:25]",
                          f"v_mov_b32 v{SEL+2}, 0", f"v_mov_b32 v{SEL+3}, 0", f"v_mov_b32 v{SEL+4}, 0", f"v_mov_b32 v{SEL+5}, 0",
                          f"v_mov_b32 v{SEL+6}, v{SEL}", f"v_mov_b32 v{SEL+7}, v{SEL+1}",
                          f"v_and_b32 v{vPA}, 7, v{vLN}", "s_and_b32 s17, s5, 0xffffffe0", f"v_lshl_add_u32 v{vPA}, v{vPA}, 2, s17"])
        if self.codepf:
            p = chain(l, 70, [f"v_and_b32 v{vOA}, 15, v{vLN}", f"s_lshr_b32 s17, s{sWL}, 1", f"v_lshl_add_u32 v{vOA}, v{vOA}, 7, s17",
                              "s_getpc_b64 s[22:23]\nL_pc2:\n  s_add_u32 s22, s22, L_tailcode-L_pc2\n  s_addc_u32 s23, s23, 0"], p)
            p = add(I(f"global_load_dword v{vPL}, v{vOA}, s[22:23]", "vmem", r=V(vOA), w=V(vPL), c=8, tag="hs"), l, l + 74, [p], cls="mem")
        it = [f"v_and_b32 v{vOA}, 15, v{vLN}", f"v_lshlrev_b32 v{vOA}, 11, v{vOA}",
              f"v_bfe_u32 v{vGA}, v{vLN}, 4, 1", f"v_lshl_add_u32 v{vOA}, v{vGA}, 5, v{vOA}",
              f"v_lshrrev_b32 v{vGA}, 5, v{vLN}", f"v_lshl_add_u32 v{vOA}, v{vGA}, 4, v{vOA}", f"v_add_u32 v{vOA}, s{sT+7}, v{vOA}",
              f"s_and_b32 s17, s{sPB}, 0xfffe3fff", f"v_lshl_add_u32 v{vGA}, v{vLN}, 4, s17", f"s_lshl_b32 s18, s{sT+7}, 10"]
        for k in range(1, 8):
            it += [f"s_sub_u32 s{40+k}, s2, {k}", f"s_and_b32 s{40+k}, s{40+k}, 7", f"s_lshl_b32 s{32+k}, s{40+k}, 14", f"s_add_u32 s{32+k}, s{32+k}, s18"]
        p = chain(l, 140, it, p)
        prev = chain(F[("QK", 3, 7)], 16, [f"v_lshl_add_u32 v{vDK}, v{vLN}, 4, s{sPB}"], p)
        chain(F[("PV", 3, 7)], 16, [f"v_mov_b32 v{vDX}, 1", f"v_mov_b32 v{vDV}, 0x7fffff00", f"v_writelane_b32 v{vDV}, s5, 0"])
        gp = self.NM - self.lastpoll
        self.poll2 = add(I(f"buffer_load_dword v{vPL}, v{vPA}, {sr(sWS,4)}, s{sT+7} offen sc1", "vmem", r=V(vPA), w=V(vPL), c=8, tag="hs"), gp, gp + 3, [p], cls="mem")
        self.slice_last = {}; pst = None
        for u in range(7):
            w0 = F[("WO", 3, u)]; hi = w0 + 15 + D + self.stagew
            prev = add(I(f"s_lshl_b32 s{sTMP}, s{sT+u}, 10", "salu", w=S(sTMP) + ["scc"], c=4), w0 + 8, hi, [prev])
            for r in range(4):
                lo = w0 + (7 if (u and r < 2) else 15) + D
                ab = 32 * u + 8 * r; tb = B1 + 8 * r; pb = SS + 16 * (u % 2) + 4 * r
                for i in range(4):
                    prev = add(vop(f"v_accvgpr_read_b32 v{tb+2*i}, a{ab+2*i}", A(ab + 2 * i), V(tb + 2 * i)), lo, hi, [prev])
                    prev = add(vop(f"v_accvgpr_read_b32 v{tb+2*i+1}, a{ab+2*i+1}", A(ab + 2 * i + 1), V(tb + 2 * i + 1)), lo, hi, [prev])
                    prev = add(cvt(pb + i, tb + 2 * i), lo, hi, [prev])
                pst = add(I(f"buffer_store_dwordx4 {vr(pb,4)}, v{vDK}, {sr(sWS,4)}, s{sTMP} offen offset:{r*1024} sc1",
                            "vmem", r=V(pb, 4) + V(vDK) + S(sTMP), c=8, tag="store", srcc=V(pb, 4)), lo, hi, [prev, pst], cls="mem")
            prev = pst; self.slice_last[u] = pst
        for n in N:
            for d in n.deps: d.succ.append(n)
        for n in reversed(N):
            for s_ in n.succ:
                n.hi = min(n.hi, s_.hi - (1 if (s_.newgap or s_.cls != "valu") else 0))
            if n.lo > n.hi + 0.5: n.lo = n.hi
        return N

    def ismiss(self, n):
        t = self.tiles[n]
        if t["kind"] in "KV": return True
        if t["idx"] == 0 and t["kind"] != "X": return True
        return t["head"] == 0 and t["kind"] == "X" and t["idx"] < 2

    def schedule(self):
        LA = self.LA; U = self.units; tiles = self.tiles
        M = [(u, i, m) for u in U for i, m in enumerate(u["mf"])]
        last = {}
        for g, (u, i, m) in enumerate(M):
            last[m["rd"][1]] = g
            if "xr" in m: last[m["xr"][0]] = g
        syncs = {}; merged = False
        for k, u in enumerate(U):
            if u["start"] > self.find[("WO", 3, self.tailsync)]:
                syncs[self.find[("WO", 3, self.tailsync)]] += u["tiles"]
            elif self.merge and not merged and u["kind"] in ("QK", "PV") and U[k - 1]["kind"] in ("QK", "PV") and k > 9:
                syncs[U[k - 1]["start"]] += u["tiles"]; merged = True
            else:
                syncs[u["start"]] = list(u["tiles"]); merged = False
        needgap = {t: g - LA for g, ts in syncs.items() for t in ts}
        N = self.build_nodes(); N.sort(key=lambda n: n.lo)
        active = []; ni = 0; out = []; vm = []; dsq = []; freed = set()
        KV = [(n, q) for n in sorted((t["n"] for t in tiles if t["kind"] in "KV"), key=lambda n: (needgap[n], n)) for q in range(4)]
        WW = [(n, q) for n in sorted((t["n"] for t in tiles if t["kind"] not in "KV"), key=lambda n: (needgap[n], n)) for q in range(4)]
        ptr = {"K": 0, "W": 0}; m0tile = [None]; dcache = {}
        def emit(x):
            out.append(x)
            if x.k == "dma": vm.append(x.tag)
            elif x.k == "vmem": vm.append(x)
            elif x.k == "ds": dsq.append(set(x.w))
        def slot_free(n, g):
            p = tiles[n]["prev"]
            if self.defer and g < self.kvgap and (tiles[n]["kind"] in "KV" or tiles[n]["idx"] > 3 or tiles[n]["head"] > 0): return False
            if p is None: return True
            if tiles[n]["kind"] == "X" and tiles[p]["kind"] == "X": return last[p] <= g
            return p in freed
        def take(ch):
            n, q = (KV if ch == "K" else WW)[ptr[ch]]; ptr[ch] += 1
            if n not in dcache: dcache[n] = self.dma_ops(n)
            m0, d, post = dcache[n]
            pre = [m0] if m0tile[0] != n else []
            m0tile[0] = n
            return n, pre, d[q], (post if q == 3 else [])
        def naive(g):
            c = [(needgap[st[ptr[ch]][0]], ch) for ch, st in (("K", KV), ("W", WW)) if ptr[ch] < len(st) and slot_free(st[ptr[ch]][0], g)]
            return min(c)[1] if c else ""
        self.trace = []; self.info = {}; self.rel = {}; self.KV = KV; self.WW = WW
        self.syncs_at = {max(g_ - LA, -1): ts for g_, ts in syncs.items()}
        for _ in range(8):
            n, pre, d, post = take("W")
            for x in pre: emit(x)
            emit(d)
        self.after_init_dma = len(out)
        for _ in range(self.n_extra_vmem): vm.append("pf")
        for ch in self.init2:
            n, pre, d, post = take(ch)
            for x in pre + [d] + post: emit(x)
        flagged = set(); self.unit_est = []; est = 0
        def ready(n, g): return n.lo <= g and all(d.done for d in n.deps)
        def fill(g, gg, used, budget, force):
            while True:
                cand = None
                for n in active:
                    if n.done or not ready(n, gg): continue
                    forced = force and n.hi <= g
                    if n.cls != "valu" and not forced: continue
                    if n.newgap and any(d.pos == gg for d in n.deps) and not forced: continue
                    fits = used + n.x.c <= budget
                    adj = out[-1].k == "trans" and n.x.k != "trans" and (out[-1].w & n.x.r)
                    if forced and not adj: cand = n; break
                    if forced and cand is None: cand = n; continue
                    if fits and not adj and cand is None: cand = n; break
                    if cand is not None and not adj and n.cls == "valu": cand = n; break
                if cand is None: return used
                emit(cand.x); used += cand.x.c; cand.done = True; cand.pos = gg
                if cand.x.k == "branch": out.append(I(f"{cand.x.tag}:", "label"))
        def scalars(lst):
            used = 0; first = True
            for x in lst:
                out.append(x)
                if x.k != "label":
                    if not first or x.k == "barrier": used += x.c
                    first = False
            return used
        for g in range(-1, self.NM):
            nb0 = len(out)
            while ni < len(N) and N[ni].lo <= g + 0.5: active.append(N[ni]); ni += 1
            active = [n for n in active if not n.done]
            active.sort(key=lambda n: n.hi)
            need_c = 0; press = False
            for n in active:
                if n.cls == "valu":
                    need_c += n.x.c
                    if need_c > (n.hi - g + 1) * 9: press = True; break
            bud = self.budget + (self.slack if press else 0)
            tg = [g + LA] if g >= 0 else list(range(0, LA))
            sync = [r for r in tg if r in syncs and r < self.NM]
            if g >= 0:
                if self.stamps and M[g][1] == 0 and self.want_stamp(M[g][0]):
                    for x in self.stamp(f"{M[g][0]['kind']}{M[g][0]['h']}_{M[g][0]['j']}"): out.append(x)
                    dsq.clear()
                if g == self.find[("WO", 3, 2)]: out.append(I("L_tailcode:", "label"))
                emit(self.mfma(M[g][2], g, 0))
            sa = []; hooks = []; postv = []
            if sync:
                need = syncs[sync[0]]
                while not all(vm.count(t_) == 4 for t_ in need):
                    assert self.plan_ is None
                    ch = naive(g); assert ch, ("deadlock", g, need)
                    n, pre, d, post = take(ch)
                    for x in pre + [d] + post: emit(x)
                idx = max(i for i, tg_ in enumerate(vm) if tg_ in need)
                if sync[0] == min(s_ for s_ in syncs if s_ >= self.find[("QK", 3, 6)]):
                    assert self.hs_load.done and vm.index(self.hs_load.x) <= idx
                    hooks = [I(f"v_readfirstlane_b32 s{sTMP}, v{vDWQ}", "valu", r=V(vDWQ), w=S(sTMP), tag="rfl", c=4),
                             I(f"s_cmp_lt_u32 s{sTMP}, 32", "salu", r=S(sTMP), w=["scc"], c=4),
                             I("s_cbranch_scc1 L_hs_slow", "branch", c=4), I("L_hs_ok:", "label")]
                sa += [I(f"s_waitcnt vmcnt({min(63, len(vm) - 1 - idx)})", "wait", c=4), I("s_barrier", "barrier", c=24)]
                for n, lg_ in last.items():
                    if lg_ <= g: freed.add(n)
            for t_ in tiles:
                if t_["n"] not in self.rel and slot_free(t_["n"], g): self.rel[t_["n"]] = g
            todo = (self.plan_.get(g, "") if self.plan_ is not None else naive(g)) if g >= 0 else ""
            dms = []
            for ci, ch in enumerate(todo):
                n, pre, d, post = take(ch); assert slot_free(n, g)
                if ci == 0: sa += pre; dms.append(d)
                else:
                    dep = [x for x in postv if x.w & d.r]; postv = [x for x in postv if not (x.w & d.r)]
                    dms += dep + pre + [d]
                postv += post
            for n in active:
                if n.cls == "scalar" and ready(n, g):
                    sa += [n.x, I(f"{n.x.tag}:", "label")]; n.done = True; n.pos = g
            ua = scalars(sa)
            rd = []; rx = []
            for r in tg:
                if r < self.NM:
                    a_, b_ = self.reads(M[r][2], r); rd += a_; rx += b_
            memnext = any(n.cls == "mem" and not n.done and ready(n, g + 0.5) for n in active)
            rdy = [n for n in active if n.cls == "valu" and not n.done and ready(n, g)]
            split = self.split and g >= 0 and len(rd) == 2 and not dms and not memnext and not rx and not (rdy and rdy[0].x.k == "trans" and not press)
            rd2 = []
            if split: rd, rd2 = rd[:1], rd[1:]
            if rx and g >= 0 and self.split:
                rd, rx = [rd[0], rx[0]], [rd[1], rx[1]]
            for x in rd: emit(x); ua += x.c
            if g >= 0: ua = fill(g, g, ua, bud if split else self.budget, False)
            if split and ua > self.budget: bud = self.budget
            rx = rd2 + rx
            if g >= 0: emit(self.mfma(M[g][2], g, 1))
            else:
                for x in rx: emit(x)
                rx = []
            lg = None; vmw = None; fl = []
            if g + 1 < self.NM:
                touch = set(self.mfma(M[g + 1][2], g + 1, 0).r | self.mfma(M[g + 1][2], g + 1, 1).r)
                idx = max([j for j, w in enumerate(dsq) if w & touch], default=-1)
                if idx >= 0: lg = len(dsq) - 1 - idx; del dsq[:idx + 1]
            for u, st in self.slice_last.items():
                if st.done and u not in flagged and g - st.pos >= self.flagd and not dms and not fl:
                    vmw = min(63, len(vm) - 1 - vm.index(st.x)); fl.append(self.flag_op(u)); flagged.add(u)
            sb = []
            if lg is not None or vmw is not None:
                sb.append(I("s_waitcnt" + (f" vmcnt({vmw})" if vmw is not None else "") + (f" lgkmcnt({lg})" if lg is not None else ""), "wait", c=4))
            for n in active:
                if n.cls == "scalar" and not n.done and ready(n, g + 0.5):
                    sb += [n.x, I(f"{n.x.tag}:", "label")]; n.done = True; n.pos = g + 0.5
            ub = scalars(sb)
            for x in rx + dms + fl: emit(x); ub += x.c
            assert len(dsq) <= 15
            if not dms and not fl:
                for n in active:
                    if n.cls == "mem" and not n.done and ready(n, g + 0.5):
                        emit(n.x); ub += n.x.c; n.done = True; n.pos = g + 0.5; break
            for x in hooks + postv: emit(x); ub += x.c
            ub = fill(g, g + 0.5, ub, bud, True)
            byts = sum(nbytes(x) for x in out[nb0:])
            dt = max(max(16.35, 8 + ua) + max(16.35, 8 + ub), byts / 1.55)
            est += dt
            self.info[g] = dict(sync=bool(sync), heavy=press, base=dt - (8 * len(todo) if press else 0))
            self.trace.append((g, dt, out[nb0:]))
            if g >= 0:
                if M[g][1] == 0: self.unit_est.append([f"{M[g][0]['kind']}{M[g][0]['h']}_{M[g][0]['j']}", 0])
                self.unit_est[-1][1] += dt
        assert ni == len(N) and all(n.done for n in N)
        assert ptr["K"] == len(KV) and ptr["W"] == len(WW)
        self.est = est; self.flagged = flagged
        self.after_poll2 = len(vm) - 1 - vm.index(self.poll2.x)
        self.after_store = {u: len(vm) - 1 - vm.index(st.x) for u, st in self.slice_last.items()}
        return out

    def evaluate(self, Lm, Lh=300, ovh=2.0, cap=11, show=False):
        ret = []; t = 0.0; per = []
        def issue(lat):
            nonlocal t
            i = len(ret)
            if i >= cap and ret[i - cap] > t: t = ret[i - cap]
            enter = max(t, ret[i - 7] if i >= 7 else 0)
            ret.append(max(enter + lat, (ret[-1] if ret else 0) + 64))
        for _ in range(8 + self.n_extra_vmem + len(self.init2)): issue(Lm)
        for g, dt, ins in self.trace:
            t0 = t
            for x in ins:
                if x.k == "dma": issue(Lm if self.ismiss(x.tag) else Lh)
                elif x.k == "vmem": issue(Lm)
                elif x.k == "wait":
                    m = re.search(r"vmcnt\((\d+)\)", x.t)
                    if m:
                        k = len(ret) - 1 - int(m.group(1))
                        if k >= 0: t = max(t, ret[k])
            t += dt + ovh
            if g >= 0:
                if g % 16 == 0: per.append(0)
                per[-1] += t - t0 - dt - ovh
        if show: print("stalls:", " ".join(f"{n}:{int(c)}" for (n, _), c in zip(self.unit_est, per) if c > 50), file=sys.stderr)
        return int(t)

    def want_stamp(self, u):
        k = (u["kind"], u["h"], u["j"])
        if self.stamps == 99: return False
        if self.stamps >= 10:
            k0 = (self.stamps - 10) * 25
            return k0 <= u["start"] // 16 <= k0 + 25
        rng = {2: (("QK", 1, 0), ("QK", 2, 0)), 3: (("QP", 0, 0), ("QK", 0, 6)), 4: (("QK", 3, 2), ("WO", 3, 7))}.get(self.stamps)
        if rng: return self.find[rng[0]] <= u["start"] <= self.find[rng[1]] and len(self.stamp_names) < 26
        return (u["kind"] == "QK" and u["j"] in (0, 2, 3, 5, 7)) or k in (("QP", 0, 0), ("WO", 3, 0))

    def stamp(self, name):
        k = len(self.stamp_names); self.stamp_names.append(name); assert k < 32, k
        return [I(f"s_memrealtime s[{sSTAMP}:{sSTAMP+1}]", "salu"), I(f"s_memtime s[{sSTAMP+2}:{sSTAMP+3}]", "salu"),
                I("s_waitcnt lgkmcnt(0)", "wait0"),
                I(f"v_writelane_b32 v{vSTAMP}, s{sSTAMP}, {k}", "valu"), I(f"v_writelane_b32 v{vSTAMP}, s{sSTAMP+2}, {k+32}", "valu")]

    def check_lgkm(self, seq):
        q = []
        for x in seq:
            if x.k in ("wait", "wait0"):
                m = re.search(r"lgkmcnt\((\d+)\)", x.t)
                if m:
                    n = int(m.group(1)); q = q[len(q) - n:] if n else []
                continue
            touch = set(x.r | x.w)
            for w in q: assert not (w & touch), ("lgkm hazard", x.t)
            if x.k == "ds": q.append(set(x.w))

    def setup(self):
        o = []
        def s(t): o.append(t)
        W, L, t0, t1, t2, t3, wb = 1, 2, 3, 4, 5, 6, 7
        s("s_cmp_ge_u32 s2, 256"); s("s_cbranch_scc1 L_end1")
        s("s_bfe_u32 s5, s2, 0x10002")
        s("s_mul_i32 s6, s5, 40"); s("s_add_u32 s6, s0, s6"); s("s_addc_u32 s7, s1, 0")
        s("s_load_dwordx4 s[48:51], s[6:7], 0")
        s("s_load_dwordx4 s[52:55], s[6:7], 16")
        s(f"v_lshrrev_b32 v{W}, 6, v0"); s(f"v_and_b32 v{L}, 63, v0")
        if self.codepf:
            s(f"v_lshl_add_u32 v20, v{W}, 4, v{L}"); s("v_lshlrev_b32 v20, 7, v20")
            s("s_getpc_b64 s[62:63]"); s("s_mov_b64 exec, 0xffff"); s("global_load_dword v21, v20, s[62:63] offset:64 nt"); s("s_mov_b64 exec, -1")
        s(f"s_load_dwordx2 s[{sRET}:{sRET+1}], s[6:7], 32")
        s("s_load_dwordx2 s[64:65], s[0:1], 96")
        s("s_load_dwordx2 s[6:7], s[0:1], 80")
        s("s_load_dwordx2 s[0:1], s[0:1], 88")
        if self.stamps: s(f"s_memrealtime s[{sSTAMP}:{sSTAMP+1}]"); s(f"s_memtime s[{sSTAMP+2}:{sSTAMP+3}]")
        s(f"v_readfirstlane_b32 s{sWL}, v{W}")
        s("s_lshr_b32 s4, s2, 3")
        s("s_and_b32 s60, s2, 1"); s("s_lshl_b32 s60, s60, 3"); s("s_lshr_b32 s61, s4, 2"); s("s_add_u32 s60, s60, s61")
        s("s_bfe_u32 s62, s2, 0x10001"); s("s_and_b32 s63, s4, 3")
        s("s_lshl_b32 s56, s62, 4"); s("s_add_u32 s56, s56, s63")
        s("s_lshl_b32 s57, s63, 1"); s("s_add_u32 s57, s57, s62")
        s("s_add_u32 s58, s57, s61")
        s(f"v_lshrrev_b32 v8, 5, v{L}"); s(f"v_bfe_u32 v9, v{L}, 4, 1")
        s(f"v_lshl_add_u32 v{t1}, v8, 2, v9")
        s(f"v_and_b32 v{t2}, 7, v{L}"); s(f"v_xor_b32 v{t2}, v{t2}, v{t1}"); s(f"v_lshlrev_b32 v{t2}, 4, v{t2}")
        s(f"v_lshrrev_b32 v{t1}, 3, v{L}"); s(f"v_lshl_add_u32 v{t1}, v{W}, 5, v{t1}"); s(f"v_lshl_add_u32 v{t2}, v{t1}, 10, v{t2}")
        s("s_lshl_b32 s59, s60, 17"); s(f"v_add_u32 v{vDX}, s59, v{t2}")
        s(f"v_and_b32 v{wb}, 1, v{W}")
        s(f"v_lshrrev_b32 v{t0}, 4, v{L}"); s(f"v_bfe_u32 v{t1}, v{L}, 2, 2")
        s(f"v_and_b32 v{t2}, 3, v{L}"); s(f"v_lshlrev_b32 v{t3}, 1, v{wb}"); s(f"v_xor_b32 v{t2}, v{t2}, v{t3}"); s(f"v_lshlrev_b32 v{t2}, 4, v{t2}")
        s(f"v_lshl_add_u32 v{t3}, v{t0}, 6, v{t2}")
        s(f"v_lshl_add_u32 v{t2}, v{W}, 4, v{t1}"); s(f"v_lshl_add_u32 v{t2}, v{t2}, 13, v{t3}")
        s("s_lshl_b32 s59, s56, 8"); s(f"v_add_u32 v{vDWQ}, s59, v{t2}")
        s(f"s_and_b32 s{sT}, s58, 7"); s(f"s_lshl_b32 s{sT}, s{sT}, 7"); s(f"s_lshl_b32 s{sT2}, s{sT}, 12")
        s(f"s_lshl_b32 s{sWL}, s{sWL}, 12")
        def srdc(d, n, delta): s(f"s_mov_b32 s{d+2}, {n - delta}"); s(f"s_mov_b32 s{d+3}, 0x20000")
        def srda(d, p, delta):
            if delta: s(f"s_add_u32 s{d}, s{p}, {delta}\n  s_addc_u32 s{d+1}, s{p+1}, 0")
            else: s(f"s_mov_b32 s{d}, s{p}"); s(f"s_mov_b32 s{d+1}, s{p+1}")
        for q in range(4): srdc(sX + 4 * q, 2 << 20, q * 7168); srdc(sWQ + 4 * q, 4 << 20, q * 31744)
        s("s_waitcnt lgkmcnt(0)")
        for q in range(4): srda(sWQ + 4 * q, 54, q * 31744)
        for q in range(4): srda(sX + 4 * q, 48, q * 7168)
        pre = o; o = []
        def stampx(k):
            s(f"s_memrealtime s[{sSTAMP}:{sSTAMP+1}]"); s(f"s_memtime s[{sSTAMP+2}:{sSTAMP+3}]"); s("s_waitcnt lgkmcnt(0)")
            s(f"v_writelane_b32 v{vSTAMP}, s{sSTAMP}, {k}"); s(f"v_writelane_b32 v{vSTAMP}, s{sSTAMP+2}, {32+k}")
        if self.stamps:
            s(f"v_mov_b32 v{vSTAMP}, 0"); s(f"v_writelane_b32 v{vSTAMP}, s{sSTAMP}, 0"); s(f"v_writelane_b32 v{vSTAMP}, s{sSTAMP+2}, 32")
        if self.stamps == 3: stampx(1)
        def tab(i):
            s(f"s_add_u32 s{sT+i}, s{sT+i-1}, 0x80"); s(f"s_and_b32 s{sT+i}, s{sT+i}, 0x380"); s(f"s_lshl_b32 s{sT2+i}, s{sT+i}, 12")
        for i in range(1, 4): tab(i)
        u0, u1, u2 = 15, 16, 17
        s(f"v_lshlrev_b32 v{u2}, 6, v{t1}"); s(f"v_and_b32 v{u1}, 3, v{L}"); s(f"v_lshl_add_u32 v{u2}, v{u1}, 3, v{u2}"); s(f"v_lshl_add_u32 v{u2}, v9, 5, v{u2}")
        s(f"v_lshl_add_u32 v{u1}, v{t0}, 12, v{u2}")
        s(f"v_add_u32 v{vLWQ}, {LBASE['WQ'] * 16384}, v{u1}"); s(f"v_xor_b32 v{vLWQ+1}, 32, v{vLWQ}")
        s(f"v_and_b32 v{u0}, 4, v{L}"); s(f"v_bfe_u32 v{u1}, v{L}, 1, 1"); s(f"v_or_b32 v{u0}, v{u0}, v{u1}")
        s(f"v_lshlrev_b32 v{u1}, 1, v{t0}"); s(f"v_xor_b32 v{u0}, v{u0}, v{u1}"); s(f"v_lshlrev_b32 v{u0}, 4, v{u0}")
        s(f"v_and_b32 v{u1}, 15, v{L}"); s(f"v_lshl_add_u32 v{u0}, v{u1}, 7, v{u0}"); s(f"v_lshl_add_u32 v{u0}, v{W}, 12, v{u0}")
        s(f"v_add_u32 v{vLX}, {LBASE['X'] * 16384}, v{u0}"); s(f"v_xor_b32 v{vLX+1}, 16, v{vLX}")
        if self.stamps == 3: stampx(2)
        crit = o; o = []
        for i in range(4, 8): tab(i)
        srda(sK, 50, 0); srdc(sK, 64 << 20, 0); srda(sV, 52, 0); srdc(sV, 64 << 20, 0)
        for i in range(8): s(f"s_lshl_b32 s{sT3+i}, s{sT+i}, 7")
        s("s_lshl_b32 s59, s60, 5"); s("s_add_u32 s59, s59, s56"); s("s_lshl_b32 s59, s59, 17")
        s(f"v_lshl_add_u32 v{t2}, v{t1}, 8, v{t3}"); s(f"v_lshl_add_u32 v{t2}, v{W}, 12, v{t2}")
        s(f"v_add_u32 v{vDV}, s59, v{t2}")
        s(f"v_bfe_u32 v{u0}, v{L}, 3, 2"); s(f"v_lshl_add_u32 v{u0}, v8, 4, v{u0}"); s(f"v_lshl_add_u32 v{u0}, v{wb}, 5, v{u0}")
        s(f"v_lshl_add_u32 v{t2}, v9, 1, v8"); s(f"v_lshl_add_u32 v{t2}, v{wb}, 2, v{t2}")
        s(f"v_and_b32 v{t3}, 7, v{L}"); s(f"v_xor_b32 v{t2}, v{t2}, v{t3}"); s(f"v_lshlrev_b32 v{t2}, 4, v{t2}")
        s(f"v_lshl_add_u32 v{t2}, v{u0}, 8, v{t2}"); s(f"v_lshrrev_b32 v{u0}, 1, v{W}"); s(f"v_lshl_add_u32 v{t2}, v{u0}, 7, v{t2}")
        s(f"v_add_u32 v{vDK}, s59, v{t2}")
        s("@kv")
        if self.codepf:
            s(f"s_lshr_b32 s{sTMP}, s{sWL}, 12"); s("s_lshl_b32 s59, s4, 2"); s(f"s_add_u32 s59, s59, s{sTMP}")
            s(f"s_mul_i32 s59, s59, {self.pf_chunks}"); s("s_lshr_b32 s59, s59, 7"); s("s_lshl_b32 s59, s59, 11")
            s(f"v_and_b32 v13, 15, v{L}"); s(f"v_lshl_add_u32 v13, v13, 7, s59")
            s("s_getpc_b64 s[62:63]")
        s(f"v_lshl_add_u32 v{t2}, v8, 2, v{t1}"); s(f"v_lshl_add_u32 v{t2}, v{W}, 5, v{t2}")
        s(f"v_and_b32 v{t3}, 3, v{L}"); s(f"v_lshlrev_b32 v{u0}, 1, v8"); s(f"v_xor_b32 v{t3}, v{t3}, v{u0}"); s(f"v_lshlrev_b32 v{t3}, 4, v{t3}")
        s(f"v_lshl_add_u32 v{t3}, v9, 6, v{t3}"); s(f"v_lshl_add_u32 v{t2}, v{t2}, 10, v{t3}")
        s(f"s_lshl_b32 s{sTMP}, s56, 17"); s(f"v_add_u32 v{vDWO}, s{sTMP}, v{t2}")
        s(f"s_lshl_b32 s{sGRP}, s5, 4"); s(f"s_add_u32 s{sGRP}, s{sGRP}, s60")
        s("s_lshl_b32 s59, s60, 18"); s("s_lshl_b32 s5, s5, 10"); s("s_add_u32 s59, s59, s5"); s(f"s_lshl_b32 s5, s{sWL}, 4"); s("s_add_u32 s59, s59, s5")
        s("s_add_u32 s6, s6, s59\n  s_addc_u32 s7, s7, 0")
        s(f"s_lshl_b32 s{sPB}, s{sGRP}, 20"); s("s_lshl_b32 s59, s57, 14"); s(f"s_add_u32 s{sPB}, s{sPB}, s59"); s(f"s_add_u32 s{sPB}, s{sPB}, s{sWL}")
        srdc(sWS, WS, 0)
        s(f"s_lshl_b32 s59, s{sGRP}, 10"); s(f"s_add_u32 s59, s59, {FLAG_OFF}")
        s("v_lshlrev_b32 v10, 2, v0"); s("v_add_u32 v10, s59, v10"); s("v_mov_b32 v11, 0x7fffff00")
        s("v_cmp_gt_u32 vcc, 32, v0"); s("v_cndmask_b32 v10, v11, v10, vcc"); s("v_and_b32 v12, 7, v0")
        s("v_cmp_eq_u32 vcc, s57, v12"); s("v_cndmask_b32 v11, 0, 1, vcc")
        if self.codepf: s("global_load_dword v14, v13, s[62:63] offset:4000")
        s(f"buffer_store_dword v11, v10, {sr(sWS,4)}, s{sT+7} offen sc1")
        s("s_lshl_b32 s5, s57, 2"); s("s_add_u32 s5, s5, s59"); s(f"s_lshr_b32 s59, s{sWL}, 7"); s("s_add_u32 s5, s5, s59")
        s(f"s_lshl_b32 s{sGRP}, s{sGRP}, 2")
        s(f"s_add_u32 s0, s0, s{sGRP}\n  s_addc_u32 s1, s1, 0")
        if self.stamps: s("s_lshl_b32 s2, s2, 16"); s("s_or_b32 s2, s2, s57")
        else: s("s_mov_b32 s2, s57")
        for q in range(4): srda(sWO + 4 * q, sRET, q * 7168); srdc(sWO + 4 * q, 4 << 20, q * 7168)
        s(f"v_and_b32 v{u0}, 7, v{L}"); s(f"v_lshlrev_b32 v{u0}, 7, v{u0}"); s(f"v_bfe_u32 v{t1}, v{L}, 3, 1"); s(f"v_lshl_add_u32 v{u0}, v{t1}, 12, v{u0}")
        s(f"v_bfe_u32 v{u1}, v{L}, 2, 1"); s(f"v_lshl_add_u32 v{u1}, v{t1}, 2, v{u1}"); s(f"v_and_b32 v{t2}, 2, v{L}"); s(f"v_or_b32 v{u1}, v{u1}, v{t2}")
        s(f"v_lshl_add_u32 v{t2}, v9, 1, v8"); s(f"v_xor_b32 v{u1}, v{u1}, v{t2}"); s(f"v_lshl_add_u32 v{vLK}, v{u1}, 4, v{u0}")
        s(f"v_xor_b32 v{vLK+1}, 64, v{vLK}")
        s(f"v_subrev_u32 v{vLV}, {(LBASE['WQ'] - LBASE['V']) * 16384}, v{vLWQ}"); s(f"v_xor_b32 v{vLV+1}, 32, v{vLV}")
        s(f"v_lshl_add_u32 v{u1}, v{t0}, 9, v{u2}")
        s(f"v_add_u32 v{vLWO}, {LBASE['WO'] * 16384}, v{u1}"); s(f"v_xor_b32 v{vLWO+1}, 32, v{vLWO}")
        s(f"s_mov_b32 s{sC}, {f32(math.log2(math.e) / math.sqrt(128.0))}")
        if not self.defer:
            late = [x for x in o if x.startswith(("buffer_", "global_"))]
            now_ = []
            for x in o:
                if x in late or x == "@kv": continue
                if x.startswith("s_getpc"): x = "s_getpc_b64 s[100:101]"
                if x.startswith("v_cndmask"): now_.append("s_nop 1")
                now_.append(x)
            if self.stamps: late = [x for x in late if not x.startswith("global_")]; now_ = [x if "s_getpc" not in x else "s_getpc_b64 s[62:63]\n  global_load_dword v14, v13, s[62:63] offset:4000" for x in now_]
            return pre, crit + now_, [x.replace("s[62:63]", "s[100:101]") for x in late]
        return pre, crit, o

    def rare(self, Sx):
        o = [f"L_rare_{Sx}:", "s_nop 15"]
        for qh in range(2):
            rs = [Sx + i for i in range(32) if (i >> 3) & 1 == qh]
            o.append(f"v_max3_f32 v{vMX}, v{rs[0]}, v{rs[1]}, 0")
            for i in range(2, 16, 2): o.append(f"v_max3_f32 v{vMX}, v{vMX}, v{rs[i]}, v{rs[i+1]}")
            for w in ("32", "16"):
                o += [f"v_mov_b32 v{vT}, v{vMX}", "s_nop 1", f"v_permlane{w}_swap_b32 v{vT}, v{vMX}", "s_nop 1", f"v_max_f32 v{vMX}, v{vMX}, v{vT}"]
            o += [f"v_exp_f32 v{vT}, -v{vMX}", "s_nop 0"]
            for r in rs: o.append(f"v_sub_f32 v{r}, v{r}, v{vMX}")
            for i in range(4): o.append(f"v_sub_f32 v{NEGM+4*qh+i}, v{NEGM+4*qh+i}, v{vMX}")
            for i in range(64):
                if (i >> 3) & 1 == qh: o.append(f"v_mul_f32 v{O+i}, v{vT}, v{O+i}")
            o.append(f"v_mul_f32 v{vL+qh}, v{vT}, v{vL+qh}")
        o += ["s_nop 1", f"s_setpc_b64 s[{sRET}:{sRET+1}]"]
        return o

    def epilogue(self):
        o = []; s = o.append
        def stamp(n):
            if self.stamps and self.stamps != 99: o.extend(x.t for x in self.stamp(n))
        poll = f"buffer_load_dword v{vPL}, v{vPA}, {sr(sWS,4)}, s{sT+7} offen sc1"
        def loads(k, so):
            for r in range(4):
                d = 16 * (k - 1) + 4 * r
                s(f"buffer_load_dwordx4 a[{d}:{d+3}], v{vGA}, {sr(sWS,4)}, s{so} offen offset:{1024*r} sc1")
        def gather(k):
            if k in self.eattempt: s(f"s_cmp_eq_u32 s{40+k}, 8"); s(f"s_cbranch_scc1 L_d{k}")
            s(f"L_p{k}:")
            s(f"s_bitcmp1_b32 vcc_lo, s{40+k}"); s(f"s_cbranch_scc1 L_g{k}")
            s(poll); s("s_add_u32 s19, s19, 1"); s("s_waitcnt vmcnt(0)")
            s(f"v_cmp_eq_u32 vcc, 1, v{vPL}")
            s("s_cmp_lt_u32 s19, 400000"); s(f"s_cbranch_scc1 L_p{k}")
            s(f"L_g{k}:"); loads(k, 32 + k); s(f"L_d{k}:")
        def accum(k):
            for r in range(4):
                for ab in range(2):
                    d = 16 * (k - 1) + 4 * r; a = 224 + 8 * r + 4 * ab
                    s(f"{MF} a[{a}:{a+3}], v[{SEL+4*ab}:{SEL+4*ab+3}], a[{d}:{d+3}], a[{a}:{a+3}]")
        s("s_mov_b32 s19, 0")
        rest = [u for u in range(7) if u not in self.flagged]
        s(f"s_waitcnt vmcnt({self.after_poll2})")
        s(f"v_cmp_eq_u32 vcc, 1, v{vPL}"); s(f"v_add_u32 v{vLN}, 0x8000, v{vOA}"); s("s_nop 0")
        extra = 0
        for k in self.eattempt:
            s(f"s_bitcmp1_b32 vcc_lo, s{40+k}"); s(f"s_cselect_b32 s16, s{32+k}, 0x7fff0000"); s(f"s_cselect_b32 s{40+k}, 8, s{40+k}")
            loads(k, 16); extra += 4
            if rest:
                u = rest.pop(0)
                s(f"s_waitcnt vmcnt({min(63, self.after_store[u] + extra)})"); s(self.flag_op(u).t); extra += 1
        for u in rest:
            s(f"s_waitcnt vmcnt({min(63, self.after_store[u] + extra)})"); s(self.flag_op(u).t); extra += 1
        stamp("drained")
        for k in range(1, 7): gather(k)
        stamp("got6")
        gather(7)
        stamp("polled")
        s("s_waitcnt vmcnt(4)")
        for k in range(1, 7): accum(k)
        s("s_waitcnt vmcnt(0)")
        accum(7)
        s("s_nop 1")
        for r in range(4):
            for i in range(8): s(f"v_accvgpr_read_b32 v{32+8*r+i}, a{224+8*r+i}")
            for i in range(4): s(f"v_cvt_pk_bf16_f32 v{64+4*r+i}, v{32+8*r+2*i}, v{32+8*r+2*i+1}")
            s("s_nop 1")
            s(f"v_permlane16_swap_b32 v{64+4*r}, v{66+4*r}"); s(f"v_permlane16_swap_b32 v{65+4*r}, v{67+4*r}")
            s(f"global_store_dwordx4 v{vLN if r & 1 else vOA}, v[{64+4*r}:{64+4*r+3}], s[6:7] offset:{(r >> 1) * 64}")
        return o

    def generate(self):
        import dmaopt, hashlib, pickle, os
        self.n_extra_vmem = 0
        self.pf_chunks = 46
        self.build_units()
        self.schedule()
        extra = {}
        for g, d, ins in self.trace:
            e = ["m" for x in ins if x.k in ("vmem", "xmem")]
            if e: extra[g] = e
        key = hashlib.md5(repr((self.plan(), [t["slot"] for t in self.tiles], self.Ls, self.hpen, self.cpen, self.LA, self.init2, self.n_extra_vmem, sorted(self.syncs_at.items()),
                                sorted(extra.items()), sorted(self.rel.items()))).encode()).hexdigest()
        fn = f"plan6_{key}.pkl"
        if os.path.exists(fn): plan, fin = pickle.load(open(fn, "rb"))
        else:
            plan, fin = dmaopt.optimize(self.NM, {g: i["base"] + 2.0 for g, i in self.info.items()}, {g: i["heavy"] for g, i in self.info.items()},
                                        {g: g >= 0 and g not in extra for g in self.info}, self.KV, self.WW, self.rel, self.syncs_at,
                                        {t["n"]: self.ismiss(t["n"]) for t in self.tiles}, extra, list(self.Ls), n_extra=self.n_extra_vmem,
                                        hpen=8.0, verbose=self.verbose, cpen=self.cpen, two=None, init2=self.init2)
            pickle.dump((plan, fin), open(fn, "wb"))
        self.plan_ = plan; self.stamp_names = ["start"] + (["dma1", "setup"] if self.stamps == 3 else [])
        seq = self.schedule()
        pre, post, _ = self.setup()
        head = seq[:self.after_init_dma]; body = seq[self.after_init_dma:]
        self.check_lgkm(body)
        head, _ = pad_hazards(head)
        body, self.npad = pad_hazards(body)
        self.code_bytes = sum(nbytes(x) for x in body)
        assert self.code_bytes > (self.pf_chunks + 1) * 2048, self.code_bytes
        L = [f"; @launch grid=(256,1,1) block=(256,1,1) lds=163840", '.amdgcn_target "amdgcn-amd-amdhsa--gfx950"', ".text",
             f".globl {NAME}_kernel", ".p2align 8", f".type {NAME}_kernel,@function", f"{NAME}_kernel:"]
        L += ["  " + x for x in pre]
        L.append(text(head)); L += ["  " + x for x in post]; L.append("  s_nop 1")
        L.append(text(body))
        if self.stamps and self.stamps != 99: L.append(text(self.stamp("issued")))
        L += [x if x.endswith(":") else "  " + x for x in self.epilogue()]
        if self.stamps:
            L += ["  s_waitcnt vmcnt(0)"]
            L.append(text(self.stamp("end")))
            L += [f"  s_cmp_lg_u32 s{sWL}, 0", "  s_cbranch_scc1 L_end1", "  v_mbcnt_lo_u32_b32 v4, -1, 0", "  v_mbcnt_hi_u32_b32 v4, -1, v4",
                  "  v_lshlrev_b32 v4, 2, v4", "  s_lshr_b32 s2, s2, 16", f"  s_lshl_b32 s{sTMP}, s2, 8", f"  s_add_u32 s{sTMP}, s{sTMP}, {WS - 256 * 256}",
                  f"  buffer_store_dword v{vSTAMP}, v4, {sr(sWS,4)}, s{sTMP} offen"]
            L.insert(1, "; stamps: " + " ".join(self.stamp_names))
        L.append("L_end1:"); L.append("  s_endpgm")
        L += ["L_hs_slow:", f"  s_mov_b32 s{sRET}, 0", "L_hs_spin:", f"  v_mov_b32 v{vDWQ}, 0",
              f"  global_load_dword v{vDWQ}, v{vDWQ}, s[0:1] sc1", f"  s_add_u32 s{sRET}, s{sRET}, 1", "  s_waitcnt vmcnt(0)",
              f"  v_readfirstlane_b32 s{sTMP}, v{vDWQ}", f"  s_cmp_gt_u32 s{sRET}, 400000", "  s_cbranch_scc1 L_hs_ok",
              f"  s_cmp_lt_u32 s{sTMP}, 32", "  s_cbranch_scc1 L_hs_spin", "  s_branch L_hs_ok"]
        for lab, Sx in self.tramps:
            L += [f"{lab}t:", f"  s_call_b64 s[{sRET}:{sRET+1}], L_rare_{Sx}", f"  s_branch {lab}"]
        for Sx in sorted(self.rares): L += self.rare(Sx)
        L += ['.section .rodata,"a"', ".p2align 6", f".amdhsa_kernel {NAME}_kernel", "  .amdhsa_next_free_vgpr 512", "  .amdhsa_next_free_sgpr 102",
              "  .amdhsa_accum_offset 256", "  .amdhsa_group_segment_fixed_size 0", "  .amdhsa_kernarg_size 104",
              "  .amdhsa_user_sgpr_count 2", "  .amdhsa_user_sgpr_kernarg_segment_ptr 1",
              "  .amdhsa_system_sgpr_workgroup_id_x 1", ".end_amdhsa_kernel"]
        return "\n".join(L) + "\n"

if __name__ == "__main__":
    import argparse
    ap = argparse.ArgumentParser()
    ap.add_argument("-o", default="k6.s"); ap.add_argument("--opt", default=""); ap.add_argument("--units", action="store_true")
    a = ap.parse_args()
    g = Gen(**eval(f"dict({a.opt})"))
    t = g.generate()
    open(a.o, "w").write(t)
    if a.units: print(" ".join(f"{n}:{int(c)}" for n, c in g.unit_est), file=sys.stderr)
    ev = [g.evaluate(L, show=(a.units and L == 1400)) for L in (1000, 1400, 1800)]
    print(a.o, "bytes", len(t), "code", g.code_bytes, "est", int(g.est), "eval", ev, "pad", g.npad, "flagged", sorted(g.flagged), file=sys.stderr)
```
